```python
import torch

def _softmax(x, axis=-1):
    return torch.softmax(x, dim=axis)
def _gelu(x):
    return torch.nn.functional.gelu(x, approximate="tanh")
def _silu(x):
    return torch.nn.functional.silu(x)
def _sigmoid(x):
    return torch.sigmoid(x)
def _layernorm(x, axis=-1, eps=1e-5):
    m = x.mean(dim=axis, keepdim=True)
    v = x.var(dim=axis, keepdim=True, unbiased=False)
    return (x - m) / torch.sqrt(v + eps)
def _scatter_add(tgt, idx, src, axis=0):
    return tgt.clone().index_add_(axis, idx, src)
def _segment_sum(src, seg, n):
    out = torch.zeros((n,) + src.shape[1:], dtype=src.dtype)
    return out.index_add_(0, seg, src)
def _pad(x, pw):
    flat = tuple(v for pair in reversed(pw) for v in pair)
    return torch.nn.functional.pad(x, flat)

kernel_name = 'standalone__cross_network_dcn__recsys'

def setup_inputs():

    _w = (lambda a: (lambda t: t.to(torch.bfloat16) if t.is_floating_point() else t)(torch.as_tensor(a)))
    B, F, D, L = 16384, 26, 32, 3
    Din = min(F * D, 1024)
    return {
        "x0": _w((lambda *s: torch.randn(*s, dtype=torch.bfloat16) * 0.05)(B, Din)),
        "ws": _w((lambda *s: torch.randn(*s, dtype=torch.bfloat16) * 0.4)(L, Din, Din) * (Din ** -0.5)),
        "bs": _w((lambda *s: torch.randn(*s, dtype=torch.bfloat16) * 3.2)(L, Din) * 0.01),
    }

def reference(x0, ws, bs):
    x = x0
    L = ws.shape[0]
    for l in range(L):
        proj = torch.einsum('bd,de->be', x, ws[l]) + bs[l]
        x = x0 * proj + x
    return x
```

```python
import sys

HEADER = """; Kernarg layout for this problem (48 bytes, ptrs only, base s[0:1]):
"""

WBYTES = 3 * 832 * 832 * 2
XBYTES = 16384 * 832 * 2
WAVE_STREAM = 3 * 26 * 13 * 1024
BT = 104 * 1024
LDS_BYTES = BT + 5 * 256 * 8


class G:
    def __init__(self):
        self.lines = []

    def e(self, s):
        self.lines.append("    " + s)

    def lab(self, s):
        self.lines.append(s + ":")

    def c(self, s):
        self.lines.append("    ; " + s)

    def text(self):
        return "\n".join(self.lines) + "\n"


def acc(u, tl):
    return 48 + (tl * 4 + u) * 4


def vr(b, n=4):
    return "v[%d:%d]" % (b, b + n - 1) if n > 1 else "v%d" % b


def ar(b, n=4):
    return "a[%d:%d]" % (b, b + n - 1) if n > 1 else "a%d" % b


def ring(par, tl):
    return (par * 13 + tl) * 4


def xfrag(buf, u):
    return 104 + (buf * 4 + u) * 4


def x0p_pair(u, p):
    return 136 + (p * 4 + u) * 4


def x0p_single(u):
    return 232 + 2 * u


def gen_prep(g):
    g.lab("dcn_prep_kernel")
    g.e("s_cmp_ge_u32 s2, 1014")
    g.e("s_cbranch_scc1 L_prep_done")
    g.e("s_load_dwordx2 s[4:5], s[0:1], 8")
    g.e("s_load_dwordx2 s[6:7], s[0:1], 40")
    g.e("v_lshrrev_b32 v1, 6, v0")
    g.e("v_and_b32 v2, 63, v0")
    g.e("s_nop 1")
    g.e("v_readfirstlane_b32 s15, v1")
    g.e("s_mov_b32 s10, 0x13B13B14")
    g.e("s_mul_hi_u32 s11, s2, s10")
    g.e("s_mul_i32 s12, s11, 13")
    g.e("s_sub_u32 s12, s2, s12")
    g.e("s_mov_b32 s10, 165191050")
    g.e("s_mul_hi_u32 s13, s11, s10")
    g.e("s_mul_i32 s14, s13, 26")
    g.e("s_sub_u32 s14, s11, s14")
    g.e("v_lshrrev_b32 v3, 4, v2")
    g.e("v_and_b32 v4, 15, v2")
    g.e("v_mul_u32_u24 v5, 0x3400, v3")
    g.e("v_lshrrev_b32 v6, 2, v4")
    g.e("v_lshl_add_u32 v5, v6, 4, v5")
    g.e("v_and_b32 v6, 3, v4")
    g.e("v_lshl_add_u32 v5, v6, 1, v5")
    g.e("v_add_u32 v6, 4992, v5")
    g.e("v_add_u32 v7, 9984, v5")
    g.e("v_lshlrev_b32 v8, 4, v2")
    g.e("s_lshr_b32 s16, s12, 1")
    g.e("s_mul_i32 s17, s15, 6")
    g.e("s_add_u32 s17, s17, s16")
    g.e("s_and_b32 s18, s12, 1")
    g.e("s_lshr_b32 s19, s15, 1")
    g.e("s_add_u32 s19, s19, 24")
    g.e("s_and_b32 s20, s15, 1")
    g.e("s_cmp_eq_u32 s12, 12")
    g.e("s_cselect_b32 s17, s19, s17")
    g.e("s_cselect_b32 s18, s20, s18")
    g.e("s_mul_i32 s21, s13, 1384448")
    g.e("s_mul_i32 s22, s14, 53248")
    g.e("s_add_u32 s21, s21, s22")
    g.e("s_lshl_b32 s22, s17, 6")
    g.e("s_add_u32 s21, s21, s22")
    g.e("s_lshl_b32 s22, s18, 3")
    g.e("s_add_u32 s21, s21, s22")
    g.e("s_mul_i32 s22, s15, 3")
    g.e("s_add_u32 s22, s22, s13")
    g.e("s_mul_i32 s22, s22, 26")
    g.e("s_add_u32 s22, s22, s14")
    g.e("s_mul_i32 s22, s22, 13")
    g.e("s_add_u32 s22, s22, s12")
    g.e("s_lshl_b32 s22, s22, 10")
    g.e("s_waitcnt lgkmcnt(0)")
    g.e("s_mov_b32 s24, s4")
    g.e("s_mov_b32 s25, s5")
    g.e("s_mov_b32 s26, %d" % WBYTES)
    g.e("s_mov_b32 s27, 0x00020000")
    g.e("s_mov_b32 s28, s6")
    g.e("s_mov_b32 s29, s7")
    g.e("s_mov_b32 s30, %d" % WBYTES)
    g.e("s_mov_b32 s31, 0x00020000")
    srcs = [("v5", 0), ("v5", 1664), ("v5", 3328), ("v6", 0), ("v6", 1664), ("v6", 3328), ("v7", 0), ("v7", 1664)]
    for j, (va, off) in enumerate(srcs):
        g.e("buffer_load_ushort v%d, %s, s[24:27], s21 offen offset:%d" % (10 + j, va, off))
    g.e("s_waitcnt vmcnt(0)")
    for j in range(4):
        g.e("v_lshl_or_b32 v%d, v%d, 16, v%d" % (20 + j, 11 + 2 * j, 10 + 2 * j))
    g.e("buffer_store_dwordx4 v[20:23], v8, s[28:31], s22 offen")
    g.lab("L_prep_done")
    g.e("s_endpgm")


V_LANE16 = [2, 3, 4, 5]
V_XR0, V_XR1 = 6, 7
V_PW0, V_PW1 = 8, 9
V_SW0, V_SW1 = 10, 11
V_GP, V_GS = 12, 13
V_BP, V_BS = 14, 15
TMP = 16

S_X0, S_WP, S_BS, S_OUT = 16, 20, 24, 28
S_W = 32
S_WOFF0, S_WOFF1, S_CNT = 34, 35, 36
S_U = [None, 40, 41, 42]


def srd(b):
    return "s[%d:%d]" % (b, b + 3)


def wload(g, par, tl, soff):
    g.e("buffer_load_dwordx4 %s, v%d, %s, %s offen offset:%d" % (
        ar(ring(par, tl)), V_LANE16[tl // 4], srd(S_WP), soff, (tl % 4) * 1024))


def gen_bias_add(g, first_layer_regs=False):
    for p in range(6):
        b0 = TMP + (p % 2) * 8
        g.e("ds_read_b128 %s, v%d offset:%d" % (vr(b0), V_BP, p * 128))
        g.e("ds_read_b128 %s, v%d offset:%d" % (vr(b0 + 4), V_BP, p * 128 + 16))
        g.e("s_waitcnt lgkmcnt(0)")
        for half in range(2):
            tl = 2 * p + half
            for u in range(4):
                a = acc(u, tl)
                for r2 in range(2):
                    g.e("v_pk_add_f32 %s, %s, %s" % (vr(a + 2 * r2, 2), vr(a + 2 * r2, 2), vr(b0 + 4 * half + 2 * r2, 2)))
    b0 = TMP
    g.e("ds_read_b128 %s, v%d" % (vr(b0), V_BS))
    g.e("s_waitcnt lgkmcnt(0)")
    for u in range(4):
        a = acc(u, 12)
        for r2 in range(2):
            g.e("v_pk_add_f32 %s, %s, %s" % (vr(a + 2 * r2, 2), vr(a + 2 * r2, 2), vr(b0 + 2 * r2, 2)))


def gen_epilogue(g, last):
    k = 0
    for p in range(6):
        for u in range(4):
            t = TMP + (k % 2) * 16
            k += 1
            X = x0p_pair(u, p)
            for j in range(4):
                g.e("v_accvgpr_read_b32 v%d, a%d" % (t + j, X + j))
            for j in range(4):
                g.e("v_lshlrev_b32 v%d, 16, v%d" % (t + 4 + 2 * j, t + j))
                g.e("v_and_b32 v%d, 0xffff0000, v%d" % (t + 5 + 2 * j, t + j))
            A = acc(u, 2 * p)
            B = acc(u, 2 * p + 1)
            for j in range(4):
                g.e("v_mul_f32 v%d, v%d, v%d" % (t + 4 + j, t + 4 + j, A + j))
            for j in range(4):
                g.e("v_mul_f32 v%d, v%d, v%d" % (t + 8 + j, t + 8 + j, B + j))
            for j in range(4):
                g.e("v_cvt_pk_bf16_f32 v%d, v%d, v%d" % (t + 12 + j, t + 4 + 2 * j, t + 5 + 2 * j))
            if not last:
                g.e("ds_write_b128 v%d, %s offset:%d" % (V_PW0 if u < 2 else V_PW1, vr(t + 12), (u & 1) * 26624 + p * 1024))
            else:
                so = "0" if u == 0 else "s%d" % S_U[u]
                g.e("buffer_store_dwordx4 %s, v%d, %s, %s offen offset:%d" % (vr(t + 12), V_GP, srd(S_OUT), so, p * 64))
    for u in range(4):
        t = TMP + (k % 2) * 16
        k += 1
        X = x0p_single(u)
        for j in range(2):
            g.e("v_accvgpr_read_b32 v%d, a%d" % (t + j, X + j))
        for j in range(2):
            g.e("v_lshlrev_b32 v%d, 16, v%d" % (t + 4 + 2 * j, t + j))
            g.e("v_and_b32 v%d, 0xffff0000, v%d" % (t + 5 + 2 * j, t + j))
        A = acc(u, 12)
        for j in range(4):
            g.e("v_mul_f32 v%d, v%d, v%d" % (t + 4 + j, t + 4 + j, A + j))
        for j in range(2):
            g.e("v_cvt_pk_bf16_f32 v%d, v%d, v%d" % (t + 12 + j, t + 4 + 2 * j, t + 5 + 2 * j))
        if not last:
            g.e("ds_write_b64 v%d, %s offset:%d" % (V_SW0 if u < 2 else V_SW1, vr(t + 12, 2), (u & 1) * 26624))
        else:
            so = "0" if u == 0 else "s%d" % S_U[u]
            g.e("buffer_store_dwordx2 %s, v%d, %s, %s offen" % (vr(t + 12, 2), V_GS, srd(S_OUT), so))


def gen_kloop(g, layer):
    L = "L_k%d" % layer
    g.e("v_mov_b32 v%d, v%d" % (V_XR0, V_LANE16[0]))
    g.e("v_add_u32 v%d, 53248, v%d" % (V_XR1, V_LANE16[0]))
    for u in range(4):
        g.e("ds_read_b128 %s, v%d offset:%d" % (ar(xfrag(0, u)), V_XR0 if u < 2 else V_XR1, (u & 1) * 26624))
    g.e("s_mov_b32 s%d, 13" % S_CNT)
    g.e("s_waitcnt vmcnt(25)")
    g.lab(L)
    for par in range(2):
        g.e("s_waitcnt lgkmcnt(0)")
        for tl in range(13):
            slot = ring(par, tl)
            for u in range(4):
                g.e("v_mfma_f32_16x16x32_bf16 %s, %s, %s, %s" % (vr(acc(u, tl)), ar(slot), ar(xfrag(par, u)), vr(acc(u, tl))))
                if u == 0:
                    if 1 <= tl <= 4:
                        uu = tl - 1
                        g.e("ds_read_b128 %s, v%d offset:%d" % (ar(xfrag(1 - par, uu)), V_XR0 if uu < 2 else V_XR1,
                                                              (uu & 1) * 26624 + (par + 1) * 1024))
                    elif par == 0 and tl == 6:
                        g.e("s_add_u32 s%d, s%d, 26624" % (S_WOFF1, S_WOFF1))
                    elif par == 1 and tl == 6:
                        g.e("s_add_u32 s%d, s%d, 26624" % (S_WOFF0, S_WOFF0))
                    elif par == 1 and tl == 7:
                        g.e("v_add_u32 v%d, 2048, v%d" % (V_XR0, V_XR0))
                    elif par == 1 and tl == 8:
                        g.e("v_add_u32 v%d, 2048, v%d" % (V_XR1, V_XR1))
                elif u == 2:
                    if par == 1 and tl == 12:
                        g.e("s_waitcnt vmcnt(24)")
                    else:
                        g.e("s_waitcnt vmcnt(24)")
                elif u == 3:
                    wload(g, par, tl, "s%d" % (S_WOFF0 if par == 0 else S_WOFF1))
    g.e("s_sub_u32 s%d, s%d, 1" % (S_CNT, S_CNT))
    g.e("s_cmp_lg_u32 s%d, 0" % S_CNT)
    g.e("s_cbranch_scc1 %s" % L)


def gen_main(g):
    g.lab("standalone__cross_network_dcn__recsys_kernel")
    g.e("s_cmp_ge_u32 s2, 256")
    g.e("s_cbranch_scc1 L_done")
    g.e("s_load_dwordx2 s[4:5], s[0:1], 0")
    g.e("s_load_dwordx2 s[6:7], s[0:1], 16")
    g.e("s_load_dwordx2 s[8:9], s[0:1], 24")
    g.e("s_load_dwordx2 s[10:11], s[0:1], 40")
    T = TMP
    g.e("v_and_b32 v1, 63, v0")
    g.e("v_lshrrev_b32 v%d, 6, v0" % T)
    g.e("s_nop 1")
    g.e("v_readfirstlane_b32 s%d, v%d" % (S_W, T))
    g.e("v_lshlrev_b32 v2, 4, v1")
    g.e("v_add_u32 v3, 4096, v2")
    g.e("v_add_u32 v4, 8192, v2")
    g.e("v_add_u32 v5, 12288, v2")
    g.e("v_lshrrev_b32 v%d, 4, v1" % (T + 1))
    g.e("v_and_b32 v%d, 15, v1" % (T + 2))
    g.e("s_mul_i32 s37, s2, 106496")
    g.e("s_mul_i32 s38, s%d, 6144" % S_W)
    g.e("s_lshr_b32 s39, s%d, 1" % S_W)
    g.e("s_add_u32 s39, s39, 24")
    g.e("s_and_b32 s43, s%d, 1" % S_W)
    g.e("v_add_u32 v%d, s38, v2" % V_PW0)
    g.e("v_add_u32 v%d, 53248, v%d" % (V_PW1, V_PW0))
    g.e("s_lshl_b32 s44, s39, 10")
    g.e("s_lshl_b32 s45, s43, 3")
    g.e("s_add_u32 s44, s44, s45")
    g.e("v_add_u32 v%d, s44, v2" % V_SW0)
    g.e("v_add_u32 v%d, 53248, v%d" % (V_SW1, V_SW0))
    g.e("v_mul_u32_u24 v%d, 0x680, v%d" % (T + 3, T + 2))
    g.e("v_lshl_add_u32 v%d, v%d, 4, v%d" % (T + 3, T + 1, T + 3))
    g.e("v_add_u32 v%d, s37, v%d" % (T + 3, T + 3))
    g.e("s_mul_i32 s44, s%d, 384" % S_W)
    g.e("v_add_u32 v%d, s44, v%d" % (V_GP, T + 3))
    g.e("s_lshl_b32 s44, s39, 6")
    g.e("s_add_u32 s44, s44, s45")
    g.e("v_add_u32 v%d, s44, v%d" % (V_GS, T + 3))
    g.e("s_mul_i32 s44, s%d, 26624" % S_W)
    g.e("v_add_u32 v%d, s44, v%d" % (T + 4, T + 3))
    g.e("v_add_u32 v%d, s44, v2" % (T + 5))
    g.e("v_lshlrev_b32 v%d, 5, v%d" % (T + 6, T + 1))
    g.e("s_mul_i32 s44, s%d, 768" % S_W)
    g.e("s_add_u32 s44, s44, %d" % BT)
    g.e("v_add_u32 v%d, s44, v%d" % (V_BP, T + 6))
    g.e("s_lshl_b32 s44, s39, 7")
    g.e("s_lshl_b32 s45, s43, 4")
    g.e("s_add_u32 s44, s44, s45")
    g.e("s_add_u32 s44, s44, %d" % BT)
    g.e("v_add_u32 v%d, s44, v%d" % (V_BS, T + 6))
    g.e("s_mov_b32 s40, 26624")
    g.e("s_mov_b32 s41, 53248")
    g.e("s_mov_b32 s42, 79872")
    g.e("v_lshlrev_b32 v%d, 2, v0" % (T + 7))
    g.e("v_lshlrev_b32 v%d, 3, v0" % (T + 8))
    g.e("v_add_u32 v%d, %d, v%d" % (T + 8, BT, T + 8))
    g.e("s_waitcnt lgkmcnt(0)")
    for (sb, sp, nbytes) in ((S_X0, 4, XBYTES), (S_BS, 6, 4992), (S_OUT, 8, XBYTES)):
        g.e("s_mov_b32 s%d, s%d" % (sb, sp))
        g.e("s_mov_b32 s%d, s%d" % (sb + 1, sp + 1))
        g.e("s_mov_b32 s%d, %d" % (sb + 2, nbytes))
        g.e("s_mov_b32 s%d, 0x00020000" % (sb + 3))
    g.e("s_mul_i32 s44, s%d, %d" % (S_W, WAVE_STREAM))
    g.e("s_add_u32 s%d, s10, s44" % S_WP)
    g.e("s_addc_u32 s%d, s11, 0" % (S_WP + 1))
    g.e("s_sub_u32 s%d, %d, s44" % (S_WP + 2, WBYTES))
    g.e("s_mov_b32 s%d, 0x00020000" % (S_WP + 3))
    g.e("s_mov_b32 s46, 4096")
    for s in range(26):
        g.e("buffer_load_dwordx4 %s, v%d, %s, 0 offen offset:%d" % (vr(48 + 4 * s), T + 4, srd(S_X0), 64 * s))
    for r in range(5):
        if r < 4:
            g.e("buffer_load_dword v%d, v%d, %s, 0 offen offset:%d" % (T + 9 + r, T + 7, srd(S_BS), 1024 * r))
        else:
            g.e("buffer_load_dword v%d, v%d, %s, s46 offen" % (T + 9 + r, T + 7, srd(S_BS)))
    g.e("s_mov_b32 s%d, 0" % S_WOFF0)
    g.e("s_mov_b32 s%d, 13312" % S_WOFF1)
    for par in range(2):
        for tl in range(13):
            wload(g, par, tl, "s%d" % (S_WOFF0 if par == 0 else S_WOFF1))
    g.e("s_mov_b32 s%d, 26624" % S_WOFF0)
    g.e("s_waitcnt vmcnt(31)")
    for s in range(26):
        g.e("ds_write_b128 v%d, %s offset:%d" % (T + 5, vr(48 + 4 * s), 1024 * s))
    g.e("s_waitcnt vmcnt(26)")
    for r in range(5):
        g.e("v_lshlrev_b32 v%d, 16, v%d" % (T + 14, T + 9 + r))
        g.e("v_and_b32 v%d, 0xffff0000, v%d" % (T + 15, T + 9 + r))
        g.e("ds_write_b64 v%d, %s offset:%d" % (T + 8, vr(T + 14, 2), 2048 * r))
        g.e("s_nop 1")
    g.e("s_waitcnt lgkmcnt(0)")
    g.e("s_barrier")
    for p in range(6):
        for u in range(4):
            g.e("ds_read_b128 %s, v%d offset:%d" % (ar(x0p_pair(u, p)), V_PW0 if u < 2 else V_PW1, (u & 1) * 26624 + p * 1024))
    for u in range(4):
        g.e("ds_read_b64 %s, v%d offset:%d" % (ar(x0p_single(u), 2), V_SW0 if u < 2 else V_SW1, (u & 1) * 26624))
    for r in range(48, 256):
        g.e("v_mov_b32 v%d, 1.0" % r)
    g.e("s_waitcnt lgkmcnt(0)")
    gen_bias_add(g)
    for layer in range(3):
        g.c("================ layer %d" % layer)
        gen_kloop(g, layer)
        g.e("s_waitcnt lgkmcnt(0)")
        g.e("s_barrier")
        g.e("s_nop 7")
        g.e("s_nop 7")
        gen_epilogue(g, layer == 2)
        if layer < 2:
            g.e("v_add_u32 v%d, 3328, v%d" % (V_BP, V_BP))
            g.e("v_add_u32 v%d, 3328, v%d" % (V_BS, V_BS))
            gen_bias_add(g)
            g.e("s_waitcnt lgkmcnt(0)")
            g.e("s_barrier")
    g.lab("L_done")
    g.e("s_endpgm")


KD = """.section .rodata,"a"
.p2align 6
.amdhsa_kernel {name}
  .amdhsa_next_free_vgpr {vgpr}
  .amdhsa_next_free_sgpr {sgpr}
  .amdhsa_accum_offset {acco}
  .amdhsa_group_segment_fixed_size 0
  .amdhsa_kernarg_size 48
  .amdhsa_user_sgpr_count 2
  .amdhsa_user_sgpr_kernarg_segment_ptr 1
  .amdhsa_system_sgpr_workgroup_id_x 1
.end_amdhsa_kernel
"""


def main():
    g = G()
    out = HEADER
    out += "; @launch kernel=dcn_prep_kernel grid=(1014,1,1) block=(256,1,1) lds=0\n"
    out += "; @launch kernel=standalone__cross_network_dcn__recsys_kernel grid=(256,1,1) block=(256,1,1) lds=%d\n" % LDS_BYTES
    out += '.amdgcn_target "amdgcn-amd-amdhsa--gfx950"\n.text\n'
    out += ".globl dcn_prep_kernel\n.p2align 8\n.type dcn_prep_kernel,@function\n"
    gen_prep(g)
    out += g.text()
    g = G()
    out += ".globl standalone__cross_network_dcn__recsys_kernel\n.p2align 8\n.type standalone__cross_network_dcn__recsys_kernel,@function\n"
    gen_main(g)
    out += g.text()
    out += KD.format(name="dcn_prep_kernel", vgpr=32, sgpr=40, acco=32)
    out += KD.format(name="standalone__cross_network_dcn__recsys_kernel", vgpr=496, sgpr=64, acco=256)
    path = sys.argv[1] if len(sys.argv) > 1 else "standalone__cross_network_dcn__recsys.s"
    open(path, "w").write(out)


if __name__ == "__main__":
    main()
```

```python
import sys

HEADER = """; Kernarg layout for this problem (48 bytes, ptrs only, base s[0:1]):
;   offset  40: d_ws      268435456 bytes workspace (unspecified values whenever your kernel or launch list starts; a list's later launches find what earlier ones wrote)
"""

KNAME = "standalone__cross_network_dcn__recsys_kernel"
WBYTES = 3 * 832 * 832 * 2
XBYTES = 16384 * 832 * 2
FR_LAYER = 338
FR_WAVE = 3 * FR_LAYER
WAVE_STREAM = FR_WAVE * 1024
BIAS_WAVE = 3 * 13 * 64
BIAS_BYTES = 4 * BIAS_WAVE
R_A, R_B, R_C = 0, 57344, 114688
LDS_BYTES = 163840

G_TILES = [[12, 0, 1, 2, 3, 4, 5], [6, 7, 8, 9, 10, 11]]


def KT(i):
    if i < 12:
        return 6 * (i // 3) + i % 3
    if i < 14:
        return 24 + (i - 12)
    j = i - 14
    return 6 * (j // 3) + 3 + j % 3


class P:
    D = 28
    LA = 3
    STAMPS = False
    DMA_AHEAD = 8
    CAP = 99


def acc(u, tl):
    return 48 + (tl * 4 + u) * 4


def ring(slot):
    return slot * 4


def XF0():
    return 4 * P.D


def xfrag(buf, u):
    return XF0() + (buf * 4 + u) * 4


def X0P0():
    return XF0() + 32


def x0p_pair(u, p):
    return X0P0() + (p * 4 + u) * 4


def x0p_single(u):
    return X0P0() + 96 + 2 * u


V_L16, V_XB1, V_XB2 = 2, 3, 4
V_EWA, V_EWB, V_ESA, V_ESB, V_LW = 5, 6, 7, 8, 9
V_GP, V_GS, V_VB, V_DMA = 10, 11, 12, 13
V_TMP = 14
EP_SETS = [14, 22]
BI_SETS = [30, 38]

S_X0, S_WP, S_BI, S_OUT = 16, 20, 24, 28
S_W, S_W1024, S_WOFF, S_DOFF = 32, 33, 34, 35
S_U = [None, 40, 41, 42]


def V(b, n=1):
    return ["v%d" % (b + i) for i in range(n)]


def A(b, n=1):
    return ["a%d" % (b + i) for i in range(n)]


def vr(b, n=4):
    return "v[%d:%d]" % (b, b + n - 1) if n > 1 else "v%d" % b


def ar(b, n=4):
    return "a[%d:%d]" % (b, b + n - 1) if n > 1 else "a%d" % b


def srd(b):
    return "s[%d:%d]" % (b, b + 3)


class Op:
    __slots__ = ("text", "kind", "reads", "writes", "accw")

    def __init__(self, text, kind, reads=(), writes=(), accw=False):
        self.text = text
        self.kind = kind
        self.reads = frozenset(reads)
        self.writes = frozenset(writes)
        self.accw = accw


def op_mfma(u, tl, slot, buf):
    a = acc(u, tl)
    return Op("v_mfma_f32_16x16x32_bf16 %s, %s, %s, %s" % (vr(a), ar(ring(slot)), ar(xfrag(buf, u)), vr(a)), "mfma",
              V(a, 4) + A(ring(slot), 4) + A(xfrag(buf, u), 4), V(a, 4))


def op_valu(text, reads, writes):
    return Op(text, "valu", reads, writes)


def op_salu(text):
    return Op(text, "salu")


def lds_ref(addr):
    if addr < R_B:
        return V_L16, addr
    if addr < R_C:
        return V_XB1, addr - R_B
    return V_XB2, addr - R_C


def ereg(l):
    return R_A if l % 2 == 0 else R_B


def xblock_addr(l, i, u):
    if i < 14:
        return ereg(l) + (i * 4 + u) * 1024
    return R_C + ((i - 14) * 4 + u) * 1024


class Emitter:
    def __init__(self):
        self.out = []
        self.n = 0
        self.vmq = []
        self.lgq = []
        self.last_mfma_w = {}
        self.last_valu_w = {}
        self.last_store_r = {}
        self.last_m0 = -100
        self.nstamp = 0
        self.stats = {"waits": 0, "nops": 0}

    def raw(self, text):
        self.out.append("    " + text)
        self.n += 1

    def comment(self, text):
        self.out.append("    ; " + text)

    def label(self, l):
        self.out.append(l + ":")

    def _wait_q(self, q, regs, la):
        pos = -1
        for i, (w, tag) in enumerate(q):
            if w and not w.isdisjoint(regs):
                pos = i
        return pos

    def emit(self, op):
        regs = op.reads | op.writes
        vm_pos = self._wait_q(self.vmq, regs, 0)
        lg_pos = self._wait_q(self.lgq, regs, 0)
        if op.kind == "barrier":
            lg_pos = len(self.lgq) - 1
        wparts = []
        if vm_pos >= 0:
            p = vm_pos
            k = 0
            while k < P.LA and p + 1 < len(self.vmq) and self.vmq[p + 1][1] == "ring" and len(self.vmq) - (p + 2) >= P.D - 8:
                p += 1
                k += 1
            cnt = len(self.vmq) - 1 - p
            assert cnt <= 63
            wparts.append("vmcnt(%d)" % cnt)
            del self.vmq[: p + 1]
        if lg_pos >= 0:
            cnt = len(self.lgq) - 1 - lg_pos
            assert cnt <= 15, cnt
            wparts.append("lgkmcnt(%d)" % cnt)
            del self.lgq[: lg_pos + 1]
        if wparts:
            self.raw("s_waitcnt " + " ".join(wparts))
            self.stats["waits"] += 1
        need = 0
        if op.kind in ("valu", "ds_wr", "vm_st", "ds_rd", "vm_ld", "dma"):
            for r in regs:
                if r in self.last_mfma_w:
                    need = max(need, 9 - (self.n - self.last_mfma_w[r]))
        if op.kind == "valu":
            for r in op.writes:
                if r in self.last_store_r:
                    need = max(need, 3 - (self.n - self.last_store_r[r]))
        if op.kind in ("vm_ld", "ds_rd"):
            for r in op.writes:
                if r in self.last_store_r:
                    need = max(need, 3 - (self.n - self.last_store_r[r]))
        if op.kind == "mfma":
            for r in op.reads:
                if r in self.last_valu_w:
                    need = max(need, 3 - (self.n - self.last_valu_w[r]))
        if op.kind == "dma":
            need = max(need, 2 - (self.n - self.last_m0))
        while need > 0:
            k = min(need, 8)
            self.raw("s_nop %d" % (k - 1))
            self.n += k - 1
            need -= k
            self.stats["nops"] += 1
        self.raw(op.text)
        idx = self.n - 1
        if op.kind == "mfma":
            for r in op.writes:
                self.last_mfma_w[r] = idx
        elif op.kind == "valu":
            for r in op.writes:
                self.last_valu_w[r] = idx
                self.last_mfma_w.pop(r, None)
        if op.kind in ("ds_wr", "vm_st"):
            for r in op.reads:
                self.last_store_r[r] = idx
        if op.kind == "salu" and "m0," in op.text:
            self.last_m0 = idx
        if op.kind in ("vm_ld",):
            self.vmq.append((op.writes, "ring" if op.accw else "ld"))
        elif op.kind == "dma":
            self.vmq.append((op.writes, "dma"))
        elif op.kind == "vm_st":
            self.vmq.append((frozenset(), "st"))
        elif op.kind == "ds_rd":
            self.lgq.append((op.writes, "rd"))
            assert len(self.lgq) <= 15
        elif op.kind == "ds_wr":
            self.lgq.append((frozenset(), "wr"))
            assert len(self.lgq) <= 15

    def stamp(self):
        if not P.STAMPS or self.nstamp >= 14:
            return
        k = 50 + 2 * self.nstamp
        self.raw("s_waitcnt lgkmcnt(0)")
        self.lgq = []
        self.raw("s_memtime s[%d:%d]" % (k, k + 1))
        if self.nstamp == 0:
            self.raw("s_memrealtime s[84:85]")
        self.raw("s_waitcnt lgkmcnt(0)")
        self.nstamp += 1

    def dump_stamps(self):
        if not P.STAMPS:
            return
        self.raw("s_waitcnt vmcnt(0) lgkmcnt(0)")
        self.vmq = []
        self.lgq = []
        self.stamp()
        self.raw("s_memrealtime s[86:87]")
        self.raw("s_waitcnt lgkmcnt(0)")
        self.raw("s_lshl_b32 s44, s2, 2")
        self.raw("s_add_u32 s44, s44, s%d" % S_W)
        self.raw("s_lshl_b32 s44, s44, 6")
        self.raw("s_add_u32 s44, s44, %d" % (16 << 20))
        self.raw("s_mov_b32 s92, s8")
        self.raw("s_mov_b32 s93, s9")
        self.raw("s_mov_b32 s94, %d" % ((16 << 20) + 65536))
        self.raw("s_mov_b32 s95, 0x00020000")
        self.raw("s_mov_b64 exec, 1")
        self.raw("v_mov_b32 v17, 0")
        for i in range(self.nstamp):
            self.raw("v_mov_b32 v16, s%d" % (50 + 2 * i))
            self.raw("buffer_store_dword v16, v17, s[92:95], s44 offen offset:%d" % (4 * i))
            self.raw("s_nop 1")
        self.raw("v_mov_b32 v16, s84")
        self.raw("buffer_store_dword v16, v17, s[92:95], s44 offen offset:56")
        self.raw("s_nop 1")
        self.raw("v_mov_b32 v16, s86")
        self.raw("buffer_store_dword v16, v17, s[92:95], s44 offen offset:60")
        self.raw("s_mov_b64 exec, -1")


def gen_prep():
    L = []
    e = L.append
    e("dcn_prep_kernel:")
    e("s_cmp_ge_u32 s2, 312")
    e("s_cbranch_scc1 L_prep_done")
    if P.STAMPS:
        e("s_memrealtime s[40:41]")
    e("s_load_dwordx2 s[4:5], s[0:1], 8")
    e("s_load_dwordx2 s[6:7], s[0:1], 40")
    e("s_load_dwordx2 s[8:9], s[0:1], 16")
    e("s_mov_b32 s10, 41297763")
    e("s_mul_hi_u32 s11, s2, s10")
    e("s_mul_i32 s12, s11, 104")
    e("s_sub_u32 s12, s2, s12")
    e("s_lshr_b32 s13, s12, 2")
    e("s_and_b32 s14, s12, 3")
    e("v_lshlrev_b32 v56, 1, v0")
    e("v_add_u32 v57, 4992, v56")
    e("v_add_u32 v58, 9984, v56")
    e("s_mul_i32 s36, s11, 832")
    e("s_lshl_b32 s37, s13, 5")
    e("s_add_u32 s36, s36, s37")
    e("s_lshl_b32 s37, s14, 3")
    e("s_add_u32 s36, s36, s37")
    e("s_mul_i32 s36, s36, 1664")
    e("s_mul_i32 s38, s11, 1664")
    e("s_waitcnt lgkmcnt(0)")
    e("s_mov_b32 s24, s4")
    e("s_mov_b32 s25, s5")
    e("s_mov_b32 s26, %d" % WBYTES)
    e("s_mov_b32 s27, 0x00020000")
    e("s_mov_b32 s32, s8")
    e("s_mov_b32 s33, s9")
    e("s_mov_b32 s34, 4992")
    e("s_mov_b32 s35, 0x00020000")
    data = 20
    srcs = [(56, 0), (56, 1664), (56, 3328), (57, 0), (57, 1664), (57, 3328), (58, 0), (58, 1664)]
    for j, (va, off) in enumerate(srcs):
        e("buffer_load_ushort v%d, v%d, s[24:27], s36 offen offset:%d" % (data + j, va, off))
    e("buffer_load_ushort v68, v56, s[32:35], s38 offen")
    e("s_mul_i32 s16, s13, 43")
    e("s_lshr_b32 s16, s16, 8")
    e("s_mul_i32 s17, s16, 6")
    e("s_sub_u32 s17, s13, s17")
    e("s_mul_i32 s18, s16, 3")
    e("s_add_u32 s18, s18, s17")
    e("s_add_u32 s19, s18, 11")
    e("s_cmp_ge_u32 s17, 3")
    e("s_cselect_b32 s18, s19, s18")
    e("s_sub_u32 s19, s13, 12")
    e("s_cmp_ge_u32 s13, 24")
    e("s_cselect_b32 s18, s19, s18")
    e("s_mul_i32 s20, s18, 7")
    e("s_mul_i32 s21, s18, 6")
    e("s_add_u32 s21, s21, 182")
    e("s_mul_i32 s22, s11, 338")
    e("s_add_u32 s20, s20, s22")
    e("s_add_u32 s21, s21, s22")
    e("s_lshl_b32 s23, s14, 4")
    e("s_mov_b32 s28, s6")
    e("s_mov_b32 s29, s7")
    e("s_mov_b32 s30, %d" % (WBYTES + BIAS_BYTES))
    e("s_mov_b32 s31, 0x00020000")
    e("s_mul_i32 s39, s11, 832")
    e("s_add_u32 s39, s39, %d" % WBYTES)
    E = 0
    D = 60
    e("v_lshrrev_b32 v11, 5, v%d" % E)
    e("v_bfe_u32 v12, v%d, 3, 2" % E)
    e("v_bfe_u32 v13, v%d, 2, 1" % E)
    e("v_and_b32 v14, 3, v%d" % E)
    e("v_mul_u32_u24 v15, 43, v11")
    e("v_lshrrev_b32 v15, 8, v15")
    e("v_mul_u32_u24 v16, 6, v15")
    e("v_sub_u32 v16, v11, v16")
    e("v_lshl_add_u32 v17, v16, 1, v13")
    e("v_add_u32 v18, 1, v17")
    e("v_add_u32 v18, s20, v18")
    e("v_subrev_u32 v19, 6, v17")
    e("v_add_u32 v19, s21, v19")
    e("v_cmp_le_u32 vcc, 3, v16")
    e("s_nop 1")
    e("v_cndmask_b32 v18, v18, v19, vcc")
    e("v_subrev_u32 v19, 24, v11")
    e("v_lshl_add_u32 v19, v19, 1, v13")
    e("v_cmp_le_u32 vcc, 24, v11")
    e("s_nop 1")
    e("v_cndmask_b32 v15, v15, v19, vcc")
    e("v_mov_b32 v19, s20")
    e("v_cndmask_b32 v18, v18, v19, vcc")
    e("v_mov_b32 v19, 12")
    e("v_cndmask_b32 v17, v17, v19, vcc")
    e("v_mul_u32_u24 v19, 1014, v15")
    e("v_add_u32 v19, v19, v18")
    e("v_lshlrev_b32 v19, 10, v19")
    e("v_lshl_add_u32 v%d, v12, 2, v14" % D)
    e("v_add_u32 v%d, s23, v%d" % (D, D))
    e("v_lshl_add_u32 v%d, v%d, 4, v19" % (D, D))
    e("v_mul_u32_u24 v64, 2496, v15")
    e("v_lshl_add_u32 v64, v17, 6, v64")
    e("v_lshl_add_u32 v64, v12, 4, v64")
    e("v_lshl_add_u32 v64, v14, 2, v64")
    e("s_waitcnt vmcnt(0)")
    for j in range(4):
        e("v_lshl_or_b32 v%d, v%d, 16, v%d" % (data + j, data + 2 * j + 1, data + 2 * j))
    e("buffer_store_dwordx4 v[%d:%d], v%d, s[28:31], 0 offen" % (data, data + 3, D))
    if P.STAMPS:
        e("s_waitcnt vmcnt(0)")
        e("s_memrealtime s[42:43]")
        e("s_waitcnt lgkmcnt(0)")
        e("s_mov_b32 s44, s6")
        e("s_mov_b32 s45, s7")
        e("s_mov_b32 s46, %d" % ((24 << 20)))
        e("s_mov_b32 s47, 0x00020000")
        e("s_lshl_b32 s48, s2, 3")
        e("s_add_u32 s48, s48, %d" % (20 << 20))
        e("v_mov_b32 v1, 0")
        e("v_mov_b32 v2, s40")
        e("v_mov_b32 v3, s42")
        e("s_mov_b64 exec, 1")
        e("buffer_store_dwordx2 v[2:3], v1, s[44:47], s48 offen")
        e("s_mov_b64 exec, -1")
    e("s_cmp_lg_u32 s12, 0")
    e("s_cbranch_scc1 L_prep_done")
    e("v_lshlrev_b32 v68, 16, v68")
    e("buffer_store_dword v68, v64, s[28:31], s39 offen")
    e("L_prep_done:")
    e("s_endpgm")
    return "\n".join(("    " + x) if not x.endswith(":") else x for x in L) + "\n"


def spread(after, ops, j0, j1):
    n = len(ops)
    if n == 0:
        return
    span = max(j1 - j0, 1)
    for k, op in enumerate(ops):
        after[j0 + (k * span) // n].append(op)


def epi_unit(l, tl_pair, u, tset, bset, last):
    p = tl_pair
    ops = []
    r = tset
    f = tset + 4
    X = x0p_pair(u, p)
    for j in range(4):
        ops.append(op_valu("v_accvgpr_read_b32 v%d, a%d" % (r + j, X + j), A(X + j), V(r + j)))
    for half in range(2):
        a = acc(u, 2 * p + half)
        for j in range(2):
            src = r + 2 * half + j
            ops.append(op_valu("v_lshlrev_b32 v%d, 16, v%d" % (f + 2 * j, src), V(src), V(f + 2 * j)))
            ops.append(op_valu("v_and_b32 v%d, 0xffff0000, v%d" % (f + 2 * j + 1, src), V(src), V(f + 2 * j + 1)))
        for j in range(4):
            ops.append(op_valu("v_mul_f32 v%d, v%d, v%d" % (f + j, f + j, a + j), V(f + j) + V(a + j), V(f + j)))
        for j in range(2):
            dst = r + 2 * half + j
            ops.append(op_valu("v_cvt_pk_bf16_f32 v%d, v%d, v%d" % (dst, f + 2 * j, f + 2 * j + 1), V(f + 2 * j, 2), V(dst)))
    if not last:
        if p < 3:
            vb = V_EWA if (l + 1) % 2 == 0 else V_EWB
            off = (p * 4 + u) * 1024
        else:
            vb = V_LW
            off = ((p - 3) * 4 + u) * 1024
        ops.append(Op("ds_write_b128 v%d, %s offset:%d" % (vb, vr(r), off), "ds_wr", V(r, 4) + V(vb), ()))
        for half in range(2):
            a = acc(u, 2 * p + half)
            for j in range(4):
                b = bset + 4 * half + j
                ops.append(op_valu("v_add_f32 v%d, v%d, v%d" % (a + j, a + j, b), V(a + j) + V(b), V(a + j)))
    else:
        so = "0" if u == 0 else "s%d" % S_U[u]
        ops.append(Op("buffer_store_dwordx4 %s, v%d, %s, %s offen offset:%d" % (vr(r), V_GP, srd(S_OUT), so, 64 * p),
                      "vm_st", V(r, 4) + V(V_GP), ()))
    return ops


def epi_unit_single(l, u, tset, bset, last):
    ops = []
    r = tset
    f = tset + 4
    X = x0p_single(u)
    for j in range(2):
        ops.append(op_valu("v_accvgpr_read_b32 v%d, a%d" % (r + j, X + j), A(X + j), V(r + j)))
    a = acc(u, 12)
    for j in range(2):
        ops.append(op_valu("v_lshlrev_b32 v%d, 16, v%d" % (f + 2 * j, r + j), V(r + j), V(f + 2 * j)))
        ops.append(op_valu("v_and_b32 v%d, 0xffff0000, v%d" % (f + 2 * j + 1, r + j), V(r + j), V(f + 2 * j + 1)))
    for j in range(4):
        ops.append(op_valu("v_mul_f32 v%d, v%d, v%d" % (f + j, f + j, a + j), V(f + j) + V(a + j), V(f + j)))
    for j in range(2):
        ops.append(op_valu("v_cvt_pk_bf16_f32 v%d, v%d, v%d" % (r + j, f + 2 * j, f + 2 * j + 1), V(f + 2 * j, 2), V(r + j)))
    if not last:
        vb = V_ESA if (l + 1) % 2 == 0 else V_ESB
        ops.append(Op("ds_write_b64 v%d, %s offset:%d" % (vb, vr(r, 2), u * 1024), "ds_wr", V(r, 2) + V(vb), ()))
        for j in range(4):
            b = bset + j
            ops.append(op_valu("v_add_f32 v%d, v%d, v%d" % (a + j, a + j, b), V(a + j) + V(b), V(a + j)))
    else:
        so = "0" if u == 0 else "s%d" % S_U[u]
        ops.append(Op("buffer_store_dwordx2 %s, v%d, %s, %s offen" % (vr(r, 2), V_GS, srd(S_OUT), so),
                      "vm_st", V(r, 2) + V(V_GS), ()))
    return ops


def bias_load(l, tl, dst):
    return Op("buffer_load_dwordx4 %s, v%d, %s, 0 offen offset:%d" % (vr(dst), V_VB, srd(S_BI), (l * 13 + tl) * 64),
              "vm_ld", V(V_VB), V(dst, 4))


def epi_group(l, g, last, ctr):
    ops = []
    items = []
    if g == 0:
        items = ["s", 0, 1, 2]
    else:
        items = [3, 4, 5]
    def bias_ops(item, bset):
        if last:
            return []
        if item == "s":
            return [bias_load(l + 1, 12, bset)]
        return [bias_load(l + 1, 2 * item, bset), bias_load(l + 1, 2 * item + 1, bset + 4)]
    bsets = []
    for k, item in enumerate(items):
        bsets.append(BI_SETS[(ctr[1] + k) % 2])
    pre = bias_ops(items[0], bsets[0])
    for k, item in enumerate(items):
        if k + 1 < len(items):
            nxt = bias_ops(items[k + 1], bsets[k + 1])
        else:
            nxt = []
        first = True
        for u in range(4):
            tset = EP_SETS[ctr[0] % 2]
            ctr[0] += 1
            if item == "s":
                uo = epi_unit_single(l, u, tset, bsets[k], last)
            else:
                uo = epi_unit(l, item, u, tset, bsets[k], last)
            if first:
                ops += nxt
                first = False
            ops += uo
    ctr[1] += len(items)
    return pre, ops


def gen_main():
    D = P.D
    em = Emitter()
    e = em.raw
    em.label(KNAME)
    e("s_cmp_ge_u32 s2, 256")
    e("s_cbranch_scc1 L_done")
    e("s_load_dwordx2 s[4:5], s[0:1], 0")
    e("s_load_dwordx2 s[6:7], s[0:1], 24")
    e("s_load_dwordx2 s[8:9], s[0:1], 40")
    T = 16
    e("v_and_b32 v1, 63, v0")
    e("v_lshrrev_b32 v%d, 6, v0" % T)
    e("s_nop 1")
    e("v_readfirstlane_b32 s%d, v%d" % (S_W, T))
    e("v_lshlrev_b32 v%d, 4, v1" % V_L16)
    e("v_lshrrev_b32 v%d, 4, v1" % (T + 1))
    e("v_and_b32 v%d, 15, v1" % (T + 2))
    e("v_add_u32 v%d, %d, v%d" % (V_XB1, R_B, V_L16))
    e("v_add_u32 v%d, %d, v%d" % (V_XB2, R_C, V_L16))
    e("s_lshl_b32 s%d, s%d, 10" % (S_W1024, S_W))
    e("s_mul_i32 s44, s%d, 12288" % S_W)
    e("v_add_u32 v%d, s44, v%d" % (V_EWA, V_L16))
    e("v_add_u32 v%d, %d, v%d" % (V_EWB, R_B, V_EWA))
    e("v_add_u32 v%d, %d, v%d" % (V_LW, R_C, V_EWA))
    e("s_lshr_b32 s45, s%d, 1" % S_W)
    e("s_and_b32 s46, s%d, 1" % S_W)
    e("s_add_u32 s47, s45, 12")
    e("s_lshl_b32 s47, s47, 12")
    e("s_lshl_b32 s48, s46, 3")
    e("s_add_u32 s47, s47, s48")
    e("v_add_u32 v%d, s47, v%d" % (V_ESA, V_L16))
    e("v_add_u32 v%d, %d, v%d" % (V_ESB, R_B, V_ESA))
    e("s_mul_i32 s37, s2, 106496")
    e("v_mul_u32_u24 v%d, 0x680, v%d" % (T + 3, T + 2))
    e("v_lshl_add_u32 v%d, v%d, 4, v%d" % (T + 3, T + 1, T + 3))
    e("v_add_u32 v%d, s37, v%d" % (T + 3, T + 3))
    e("s_mul_i32 s44, s%d, 384" % S_W)
    e("v_add_u32 v%d, s44, v%d" % (V_GP, T + 3))
    e("s_add_u32 s47, s45, 24")
    e("s_lshl_b32 s47, s47, 6")
    e("s_add_u32 s47, s47, s48")
    e("v_add_u32 v%d, s47, v%d" % (V_GS, T + 3))
    e("v_lshlrev_b32 v%d, 4, v%d" % (V_VB, T + 1))
    e("s_mul_i32 s44, s%d, 26624" % S_W)
    e("v_add_u32 v%d, s44, v%d" % (V_DMA, T + 3))
    e("s_mov_b32 s40, 26624")
    e("s_mov_b32 s41, 53248")
    e("s_mov_b32 s42, 79872")
    e("s_waitcnt lgkmcnt(0)")
    for (sb, sp, nbytes) in ((S_X0, 4, XBYTES), (S_OUT, 6, XBYTES)):
        e("s_mov_b32 s%d, s%d" % (sb, sp))
        e("s_mov_b32 s%d, s%d" % (sb + 1, sp + 1))
        e("s_mov_b32 s%d, %d" % (sb + 2, nbytes))
        e("s_mov_b32 s%d, 0x00020000" % (sb + 3))
    e("s_mul_i32 s44, s%d, %d" % (S_W, WAVE_STREAM))
    e("s_add_u32 s%d, s8, s44" % S_WP)
    e("s_addc_u32 s%d, s9, 0" % (S_WP + 1))
    e("s_mov_b32 s%d, %d" % (S_WP + 2, WAVE_STREAM))
    e("s_mov_b32 s%d, 0x00020000" % (S_WP + 3))
    e("s_mul_i32 s44, s%d, %d" % (S_W, BIAS_WAVE))
    e("s_add_u32 s44, s44, %d" % WBYTES)
    e("s_add_u32 s%d, s8, s44" % S_BI)
    e("s_addc_u32 s%d, s9, 0" % (S_BI + 1))
    e("s_mov_b32 s%d, %d" % (S_BI + 2, BIAS_WAVE))
    e("s_mov_b32 s%d, 0x00020000" % (S_BI + 3))
    em.stamp()

    M = []
    meta = []
    kstart = {}
    fr = 0
    kk = 0
    frag_first = []
    for l in range(3):
        for g in range(2):
            for i in range(26):
                kstart[(l, g, i)] = len(M)
                for c, tl in enumerate(G_TILES[g]):
                    frag_first.append(len(M))
                    for u in range(4):
                        M.append(op_mfma(u, tl, fr % D, kk % 2))
                        meta.append((l, g, i, c, u))
                    fr += 1
                kk += 1
    NM = len(M)
    after = [[] for _ in range(NM + 1)]
    before = [[] for _ in range(NM + 1)]

    def ring_load_ops(n):
        ops = []
        if n >= FR_WAVE:
            return ops
        if n % 4 == 0:
            ops.append(op_salu("s_mov_b32 s%d, %d" % (S_WOFF, n * 1024)))
        ops.append(Op("buffer_load_dwordx4 %s, v%d, %s, s%d offen offset:%d" % (ar(ring(n % D)), V_L16, srd(S_WP), S_WOFF, (n % 4) * 1024),
                      "vm_ld", V(V_L16), A(ring(n % D), 4), accw=True))
        return ops

    for n in range(FR_WAVE):
        after[frag_first[n] + 3] += ring_load_ops(n + D)

    def xfrag_reads(l, i, buf):
        ops = []
        for u in range(4):
            vb, off = lds_ref(xblock_addr(l, i, u))
            ops.append(Op("ds_read_b128 %s, v%d offset:%d" % (ar(xfrag(buf, u)), vb, off), "ds_rd", V(vb), A(xfrag(buf, u), 4)))
        return ops

    seq = [(l, g, i) for l in range(3) for g in range(2) for i in range(26)]
    for k in range(len(seq) - 1):
        l, g, i = seq[k]
        l2, g2, i2 = seq[k + 1]
        ops = xfrag_reads(l2, i2, (k + 1) % 2)
        j0 = kstart[(l, g, i)]
        for t, op in enumerate(ops):
            after[j0 + 1 + 2 * t].append(op)

    def barrier(reads=()):
        return Op("s_barrier", "barrier", reads, ())

    def dma_ops(i):
        la = R_A + i * 4096 if i < 14 else R_C + (i - 14) * 4096
        return [op_salu("s_add_u32 m0, s%d, %d" % (S_W1024, la)),
                op_salu("s_mov_b32 s%d, %d" % (S_DOFF, 64 * KT(i))),
                Op("buffer_load_dwordx4 v%d, %s, s%d offen lds" % (V_DMA, srd(S_X0), S_DOFF), "dma", V(V_DMA), ["L:dma%d" % i])]

    AH = P.DMA_AHEAD
    for i in range(AH, 26):
        before[kstart[(0, 0, i - AH)]] += dma_ops(i)
    i = AH
    while i < 26:
        chunk = [x for x in (i, i + 1) if x < 26]
        before[kstart[(0, 0, i - 2)]].append(barrier(["L:dma%d" % x for x in chunk]))
        i += 2
    last_pub = kstart[(0, 0, 24 - 2)]

    def x0p_ops(g):
        ops = []
        if g == 0:
            for u in range(4):
                ops.append(Op("ds_read_b64 %s, v%d offset:%d" % (ar(x0p_single(u), 2), V_ESA, u * 1024), "ds_rd", V(V_ESA), A(x0p_single(u), 2)))
            for p in range(3):
                for u in range(4):
                    ops.append(Op("ds_read_b128 %s, v%d offset:%d" % (ar(x0p_pair(u, p)), V_EWA, (p * 4 + u) * 1024), "ds_rd", V(V_EWA), A(x0p_pair(u, p), 4)))
        else:
            for p in range(3, 6):
                for u in range(4):
                    ops.append(Op("ds_read_b128 %s, v%d offset:%d" % (ar(x0p_pair(u, p)), V_LW, ((p - 3) * 4 + u) * 1024), "ds_rd", V(V_LW), A(x0p_pair(u, p), 4)))
        return ops
    spread(after, x0p_ops(0), kstart[(0, 0, 15)], kstart[(0, 0, 24)])
    spread(after, x0p_ops(1), kstart[(0, 1, 2)], kstart[(0, 1, 12)])


    ctr = [0, 0]
    tail_ops = []
    for l in range(3):
        last = (l == 2)
        pre, ops = epi_group(l, 0, last, ctr)
        j0 = kstart[(l, 1, 0)]
        for op in pre:
            after[j0].append(op)
        spread(after, ops, kstart[(l, 1, 1)], kstart[(l, 1, 24)])
        pre, ops = epi_group(l, 1, last, ctr)
        if not last:
            for op in pre:
                after[kstart[(l, 1, 24)]].append(op)
            spread(after, ops, kstart[(l + 1, 0, 0)] + 2, kstart[(l + 1, 0, 12)] + 20)
            before[kstart[(l, 1, 25)]].append(barrier())
            before[kstart[(l + 1, 0, 13)]].append(barrier())
        else:
            tail_ops = ops

    E = em.emit
    for tl in G_TILES[0] + G_TILES[1]:
        E(bias_load(0, tl, acc(0, tl)))
    for i in range(AH):
        for op in dma_ops(i):
            E(op)
    for n in range(D):
        for op in ring_load_ops(n):
            E(op)
    for tl in G_TILES[0] + G_TILES[1]:
        a0 = acc(0, tl)
        for u in (3, 2, 1, 0):
            a = acc(u, tl)
            for j in range(4):
                E(op_valu("v_add_f32 v%d, 1.0, v%d" % (a + j, a0 + j), V(a0 + j), V(a + j)))
    E(barrier(["L:dma%d" % x for x in range(AH)]))
    em.stamp()
    for op in xfrag_reads(0, 0, 0):
        E(op)
    for j in range(NM):
        l, g, i, c, u = meta[j]
        if P.STAMPS and i == 0 and c == 0 and u == 0:
            em.stamp()
        for op in before[j]:
            E(op)
        E(M[j])
        for op in after[j]:
            E(op)
    em.stamp()
    for op in tail_ops:
        E(op)
    em.dump_stamps()
    em.label("L_done")
    e("s_endpgm")
    sys.stderr.write("main: %d instrs, waits %d, nops %d\n" % (em.n, em.stats["waits"], em.stats["nops"]))
    return "\n".join(em.out) + "\n"


KD = """.section .rodata,"a"
.p2align 6
.amdhsa_kernel {name}
  .amdhsa_next_free_vgpr {vgpr}
  .amdhsa_next_free_sgpr {sgpr}
  .amdhsa_accum_offset {acco}
  .amdhsa_group_segment_fixed_size 0
  .amdhsa_kernarg_size 48
  .amdhsa_user_sgpr_count 2
  .amdhsa_user_sgpr_kernarg_segment_ptr 1
  .amdhsa_system_sgpr_workgroup_id_x 1
.end_amdhsa_kernel
"""


def main():
    args = sys.argv[1:]
    path = "standalone__cross_network_dcn__recsys.s"
    for a in args:
        if a == "--stamps":
            P.STAMPS = True
        elif a.startswith("--D="):
            P.D = int(a[4:])
        elif a.startswith("--LA="):
            P.LA = int(a[5:])
        elif a.startswith("--AH="):
            P.DMA_AHEAD = int(a[5:])
        else:
            path = a
    assert 4 * P.D + 32 + 104 <= 256
    out = HEADER
    out += "; @launch kernel=dcn_prep_kernel grid=(312,1,1) block=(832,1,1) lds=0\n"
    out += "; @launch kernel=%s grid=(256,1,1) block=(256,1,1) lds=%d\n" % (KNAME, LDS_BYTES)
    out += '.amdgcn_target "amdgcn-amd-amdhsa--gfx950"\n.text\n'
    out += ".globl dcn_prep_kernel\n.p2align 8\n.type dcn_prep_kernel,@function\n"
    out += gen_prep()
    out += ".globl %s\n.p2align 8\n.type %s,@function\n" % (KNAME, KNAME)
    out += gen_main()
    out += KD.format(name="dcn_prep_kernel", vgpr=72, sgpr=56, acco=72)
    out += KD.format(name=KNAME, vgpr=256 + 4 * P.D + 136, sgpr=96, acco=256)
    open(path, "w").write(out)


if __name__ == "__main__":
    main()
```

```python
import sys

HEADER = """; Kernarg layout for this problem (48 bytes, ptrs only, base s[0:1]):
;   offset  40: d_ws      268435456 bytes workspace (unspecified values whenever your kernel or launch list starts; a list's later launches find what earlier ones wrote)
"""

KNAME = "standalone__cross_network_dcn__recsys_kernel"
WBYTES = 3 * 832 * 832 * 2
XBYTES = 16384 * 832 * 2
FR_LAYER = 338
FR_WAVE = 3 * FR_LAYER
WAVE_STREAM = FR_WAVE * 1024
BIAS_WAVE = 3 * 13 * 64
BIAS_BYTES = 4 * BIAS_WAVE
R_A, R_B, R_C = 0, 57344, 114688
LDS_BYTES = 163840

G_TILES = [[12, 0, 1, 2, 3, 4, 5], [6, 7, 8, 9, 10, 11]]


def KT(i):
    if i < 12:
        return 6 * (i // 3) + i % 3
    if i < 14:
        return 24 + (i - 12)
    j = i - 14
    return 6 * (j // 3) + 3 + j % 3


class P:
    D = 28
    LA = 6
    STAMPS = False
    DMA_AHEAD = 8
    DEFER = False
    DMAB = 1
    RLAG = 1
    E0END = 24
    E1END = 12


def acc(u, tl):
    return 48 + (tl * 4 + u) * 4


def ring(slot):
    return slot * 4


def XF0():
    return 4 * P.D


def xfrag(buf, u):
    return XF0() + (buf * 4 + u) * 4


def X0P0():
    return XF0() + 32


def x0p_pair(u, p):
    return X0P0() + (p * 4 + u) * 4


def x0p_single(u):
    return X0P0() + 96 + 2 * u


V_L16, V_XB1, V_XB2 = 2, 3, 4
V_EWA, V_EWB, V_ESA, V_ESB, V_LW = 5, 6, 7, 8, 9
V_GP, V_GS, V_VB, V_DMA = 10, 11, 12, 13
V_TMP = 14
EP_SETS = [14, 22]
BI_SETS = [30, 38]

S_X0, S_WP, S_BI, S_OUT = 16, 20, 24, 28
S_W, S_W1024, S_WOFF, S_DOFF = 32, 33, 34, 35
S_U = [None, 40, 41, 42]


def V(b, n=1):
    return ["v%d" % (b + i) for i in range(n)]


def A(b, n=1):
    return ["a%d" % (b + i) for i in range(n)]


def vr(b, n=4):
    return "v[%d:%d]" % (b, b + n - 1) if n > 1 else "v%d" % b


def ar(b, n=4):
    return "a[%d:%d]" % (b, b + n - 1) if n > 1 else "a%d" % b


def srd(b):
    return "s[%d:%d]" % (b, b + 3)


class Op:
    __slots__ = ("text", "kind", "reads", "writes", "accw")

    def __init__(self, text, kind, reads=(), writes=(), accw=False):
        self.text = text
        self.kind = kind
        self.reads = frozenset(reads)
        self.writes = frozenset(writes)
        self.accw = accw


def op_mfma(u, tl, slot, buf):
    a = acc(u, tl)
    return Op("v_mfma_f32_16x16x32_bf16 %s, %s, %s, %s" % (vr(a), ar(ring(slot)), ar(xfrag(buf, u)), vr(a)), "mfma",
              V(a, 4) + A(ring(slot), 4) + A(xfrag(buf, u), 4), V(a, 4))


def op_valu(text, reads, writes):
    return Op(text, "valu", reads, writes)


def op_salu(text):
    return Op(text, "salu")


def lds_ref(addr):
    if addr < R_B:
        return V_L16, addr
    if addr < R_C:
        return V_XB1, addr - R_B
    return V_XB2, addr - R_C


def ereg(l):
    return R_A if l % 2 == 0 else R_B


def xblock_addr(l, i, u):
    if i < 14:
        return ereg(l) + (i * 4 + u) * 1024
    return R_C + ((i - 14) * 4 + u) * 1024


class Emitter:
    def __init__(self):
        self.out = []
        self.n = 0
        self.vmq = []
        self.lgq = []
        self.last_mfma_w = {}
        self.last_valu_w = {}
        self.last_store_r = {}
        self.last_m0 = -100
        self.nstamp = 0
        self.stats = {"waits": 0, "nops": 0}

    def raw(self, text):
        self.out.append("    " + text)
        self.n += 1

    def comment(self, text):
        self.out.append("    ; " + text)

    def label(self, l):
        self.out.append(l + ":")

    def _wait_q(self, q, regs, la):
        pos = -1
        for i, (w, tag) in enumerate(q):
            if w and not w.isdisjoint(regs):
                pos = i
        return pos

    def emit(self, op):
        regs = op.reads | op.writes
        vm_pos = self._wait_q(self.vmq, regs, 0)
        lg_pos = self._wait_q(self.lgq, regs, 0)
        if op.kind == "barrier":
            lg_pos = len(self.lgq) - 1
        wparts = []
        if vm_pos >= 0:
            p = vm_pos
            k = 0
            while k < P.LA and p + 1 < len(self.vmq) and self.vmq[p + 1][1] == "ring" and len(self.vmq) - (p + 2) >= P.D - 9:
                p += 1
                k += 1
            cnt = len(self.vmq) - 1 - p
            assert cnt <= 63
            wparts.append("vmcnt(%d)" % cnt)
            del self.vmq[: p + 1]
        if lg_pos >= 0:
            k = 0
            while k < 3 and lg_pos + 1 < len(self.lgq) and self.lgq[lg_pos + 1][1] == "rd":
                lg_pos += 1
                k += 1
            cnt = len(self.lgq) - 1 - lg_pos
            assert cnt <= 15, cnt
            wparts.append("lgkmcnt(%d)" % cnt)
            del self.lgq[: lg_pos + 1]
        if wparts:
            self.raw("s_waitcnt " + " ".join(wparts))
            self.stats["waits"] += 1
        need = 0
        if op.kind in ("valu", "ds_wr", "vm_st", "ds_rd", "vm_ld", "dma"):
            for r in regs:
                if r in self.last_mfma_w:
                    need = max(need, 9 - (self.n - self.last_mfma_w[r]))
        if op.kind == "valu":
            for r in op.writes:
                if r in self.last_store_r:
                    need = max(need, 3 - (self.n - self.last_store_r[r]))
        if op.kind in ("vm_ld", "ds_rd"):
            for r in op.writes:
                if r in self.last_store_r:
                    need = max(need, 3 - (self.n - self.last_store_r[r]))
        if op.kind == "mfma":
            for r in op.reads:
                if r in self.last_valu_w:
                    need = max(need, 3 - (self.n - self.last_valu_w[r]))
        if op.kind == "dma":
            need = max(need, 2 - (self.n - self.last_m0))
        while need > 0:
            k = min(need, 8)
            self.raw("s_nop %d" % (k - 1))
            self.n += k - 1
            need -= k
            self.stats["nops"] += 1
        self.raw(op.text)
        idx = self.n - 1
        if op.kind == "mfma":
            for r in op.writes:
                self.last_mfma_w[r] = idx
        elif op.kind == "valu":
            for r in op.writes:
                self.last_valu_w[r] = idx
                self.last_mfma_w.pop(r, None)
        if op.kind in ("ds_wr", "vm_st"):
            for r in op.reads:
                self.last_store_r[r] = idx
        if op.kind == "salu" and "m0," in op.text:
            self.last_m0 = idx
        if op.kind in ("vm_ld", "dma", "vm_st"):
            while len(self.vmq) >= 63:
                self.vmq.pop(0)
        if op.kind in ("vm_ld",):
            self.vmq.append((op.writes, "ring" if op.accw else "ld"))
        elif op.kind == "dma":
            self.vmq.append((op.writes, "dma"))
        elif op.kind == "vm_st":
            self.vmq.append((frozenset(), "st"))
        elif op.kind == "ds_rd":
            self.lgq.append((op.writes, "rd"))
            assert len(self.lgq) <= 15
        elif op.kind == "ds_wr":
            self.lgq.append((frozenset(), "wr"))
            assert len(self.lgq) <= 15

    def stamp(self):
        if not P.STAMPS or self.nstamp >= 14:
            return
        k = 50 + 2 * self.nstamp
        self.raw("s_waitcnt lgkmcnt(0)")
        self.lgq = []
        self.raw("s_memtime s[%d:%d]" % (k, k + 1))
        if self.nstamp == 0:
            self.raw("s_memrealtime s[84:85]")
        self.raw("s_waitcnt lgkmcnt(0)")
        self.nstamp += 1

    def dump_stamps(self):
        if not P.STAMPS:
            return
        self.raw("s_waitcnt vmcnt(0) lgkmcnt(0)")
        self.vmq = []
        self.lgq = []
        self.stamp()
        self.raw("s_memrealtime s[86:87]")
        self.raw("s_waitcnt lgkmcnt(0)")
        self.raw("s_lshl_b32 s44, s2, 2")
        self.raw("s_add_u32 s44, s44, s%d" % S_W)
        self.raw("s_lshl_b32 s44, s44, 6")
        self.raw("s_add_u32 s44, s44, %d" % (16 << 20))
        self.raw("s_mov_b32 s92, s8")
        self.raw("s_mov_b32 s93, s9")
        self.raw("s_mov_b32 s94, %d" % ((16 << 20) + 65536))
        self.raw("s_mov_b32 s95, 0x00020000")
        self.raw("s_mov_b64 exec, 1")
        self.raw("v_mov_b32 v17, 0")
        for i in range(self.nstamp):
            self.raw("v_mov_b32 v16, s%d" % (50 + 2 * i))
            self.raw("buffer_store_dword v16, v17, s[92:95], s44 offen offset:%d" % (4 * i))
            self.raw("s_nop 1")
        self.raw("v_mov_b32 v16, s84")
        self.raw("buffer_store_dword v16, v17, s[92:95], s44 offen offset:56")
        self.raw("s_nop 1")
        self.raw("v_mov_b32 v16, s86")
        self.raw("buffer_store_dword v16, v17, s[92:95], s44 offen offset:60")
        self.raw("s_mov_b64 exec, -1")


def gen_prep():
    L = []
    e = L.append
    e("dcn_prep_kernel:")
    e("s_cmp_ge_u32 s2, 312")
    e("s_cbranch_scc1 L_prep_done")
    if P.STAMPS:
        e("s_memrealtime s[40:41]")
    e("s_load_dwordx2 s[4:5], s[0:1], 8")
    e("s_load_dwordx2 s[6:7], s[0:1], 40")
    e("s_load_dwordx2 s[8:9], s[0:1], 16")
    e("s_mov_b32 s10, 41297763")
    e("s_mul_hi_u32 s11, s2, s10")
    e("s_mul_i32 s12, s11, 104")
    e("s_sub_u32 s12, s2, s12")
    e("s_lshr_b32 s13, s12, 2")
    e("s_and_b32 s14, s12, 3")
    e("v_lshlrev_b32 v56, 1, v0")
    e("v_add_u32 v57, 4992, v56")
    e("v_add_u32 v58, 9984, v56")
    e("s_mul_i32 s36, s11, 832")
    e("s_lshl_b32 s37, s13, 5")
    e("s_add_u32 s36, s36, s37")
    e("s_lshl_b32 s37, s14, 3")
    e("s_add_u32 s36, s36, s37")
    e("s_mul_i32 s36, s36, 1664")
    e("s_mul_i32 s38, s11, 1664")
    e("s_waitcnt lgkmcnt(0)")
    e("s_mov_b32 s24, s4")
    e("s_mov_b32 s25, s5")
    e("s_mov_b32 s26, %d" % WBYTES)
    e("s_mov_b32 s27, 0x00020000")
    e("s_mov_b32 s32, s8")
    e("s_mov_b32 s33, s9")
    e("s_mov_b32 s34, 4992")
    e("s_mov_b32 s35, 0x00020000")
    data = 20
    srcs = [(56, 0), (56, 1664), (56, 3328), (57, 0), (57, 1664), (57, 3328), (58, 0), (58, 1664)]
    for j, (va, off) in enumerate(srcs):
        e("buffer_load_ushort v%d, v%d, s[24:27], s36 offen offset:%d" % (data + j, va, off))
    e("buffer_load_ushort v68, v56, s[32:35], s38 offen")
    e("s_mul_i32 s16, s13, 43")
    e("s_lshr_b32 s16, s16, 8")
    e("s_mul_i32 s17, s16, 6")
    e("s_sub_u32 s17, s13, s17")
    e("s_mul_i32 s18, s16, 3")
    e("s_add_u32 s18, s18, s17")
    e("s_add_u32 s19, s18, 11")
    e("s_cmp_ge_u32 s17, 3")
    e("s_cselect_b32 s18, s19, s18")
    e("s_sub_u32 s19, s13, 12")
    e("s_cmp_ge_u32 s13, 24")
    e("s_cselect_b32 s18, s19, s18")
    e("s_mul_i32 s20, s18, 7")
    e("s_mul_i32 s21, s18, 6")
    e("s_add_u32 s21, s21, 182")
    e("s_mul_i32 s22, s11, 338")
    e("s_add_u32 s20, s20, s22")
    e("s_add_u32 s21, s21, s22")
    e("s_lshl_b32 s23, s14, 4")
    e("s_mov_b32 s28, s6")
    e("s_mov_b32 s29, s7")
    e("s_mov_b32 s30, %d" % (WBYTES + BIAS_BYTES))
    e("s_mov_b32 s31, 0x00020000")
    e("s_mul_i32 s39, s11, 832")
    e("s_add_u32 s39, s39, %d" % WBYTES)
    E = 0
    D = 60
    e("v_lshrrev_b32 v11, 5, v%d" % E)
    e("v_bfe_u32 v12, v%d, 3, 2" % E)
    e("v_bfe_u32 v13, v%d, 2, 1" % E)
    e("v_and_b32 v14, 3, v%d" % E)
    e("v_mul_u32_u24 v15, 43, v11")
    e("v_lshrrev_b32 v15, 8, v15")
    e("v_mul_u32_u24 v16, 6, v15")
    e("v_sub_u32 v16, v11, v16")
    e("v_lshl_add_u32 v17, v16, 1, v13")
    e("v_add_u32 v18, 1, v17")
    e("v_add_u32 v18, s20, v18")
    e("v_subrev_u32 v19, 6, v17")
    e("v_add_u32 v19, s21, v19")
    e("v_cmp_le_u32 vcc, 3, v16")
    e("s_nop 1")
    e("v_cndmask_b32 v18, v18, v19, vcc")
    e("v_subrev_u32 v19, 24, v11")
    e("v_lshl_add_u32 v19, v19, 1, v13")
    e("v_cmp_le_u32 vcc, 24, v11")
    e("s_nop 1")
    e("v_cndmask_b32 v15, v15, v19, vcc")
    e("v_mov_b32 v19, s20")
    e("v_cndmask_b32 v18, v18, v19, vcc")
    e("v_mov_b32 v19, 12")
    e("v_cndmask_b32 v17, v17, v19, vcc")
    e("v_mul_u32_u24 v19, 1014, v15")
    e("v_add_u32 v19, v19, v18")
    e("v_lshlrev_b32 v19, 10, v19")
    e("v_lshl_add_u32 v%d, v12, 2, v14" % D)
    e("v_add_u32 v%d, s23, v%d" % (D, D))
    e("v_lshl_add_u32 v%d, v%d, 4, v19" % (D, D))
    e("v_mul_u32_u24 v64, 2496, v15")
    e("v_lshl_add_u32 v64, v17, 6, v64")
    e("v_lshl_add_u32 v64, v12, 4, v64")
    e("v_lshl_add_u32 v64, v14, 2, v64")
    e("s_waitcnt vmcnt(0)")
    for j in range(4):
        e("v_lshl_or_b32 v%d, v%d, 16, v%d" % (data + j, data + 2 * j + 1, data + 2 * j))
    e("buffer_store_dwordx4 v[%d:%d], v%d, s[28:31], 0 offen" % (data, data + 3, D))
    if P.STAMPS:
        e("s_waitcnt vmcnt(0)")
        e("s_memrealtime s[42:43]")
        e("s_waitcnt lgkmcnt(0)")
        e("s_mov_b32 s44, s6")
        e("s_mov_b32 s45, s7")
        e("s_mov_b32 s46, %d" % ((24 << 20)))
        e("s_mov_b32 s47, 0x00020000")
        e("s_lshl_b32 s48, s2, 3")
        e("s_add_u32 s48, s48, %d" % (20 << 20))
        e("v_mov_b32 v1, 0")
        e("v_mov_b32 v2, s40")
        e("v_mov_b32 v3, s42")
        e("s_mov_b64 exec, 1")
        e("buffer_store_dwordx2 v[2:3], v1, s[44:47], s48 offen")
        e("s_mov_b64 exec, -1")
    e("s_cmp_lg_u32 s12, 0")
    e("s_cbranch_scc1 L_prep_done")
    e("v_lshlrev_b32 v68, 16, v68")
    e("buffer_store_dword v68, v64, s[28:31], s39 offen")
    e("L_prep_done:")
    e("s_endpgm")
    return "\n".join(("    " + x) if not x.endswith(":") else x for x in L) + "\n"


deferred = []


class Sched:
    MEM = ("vm_ld", "ds_rd", "ds_wr", "vm_st", "dma")

    def __init__(self, nm):
        self.nm = nm
        self.ops = [[] for _ in range(nm + 1)]
        self.slots = [0] * (nm + 1)
        self.excl = [False] * (nm + 1)
        self.overflow = 0

    def place(self, op, jmin):
        j = max(jmin, 0)
        nm = self.nm
        if op.kind in self.MEM:
            while j < nm:
                if not self.ops[j]:
                    break
                if op.kind == "ds_rd" and len(self.ops[j]) == 1 and self.ops[j][0].kind == "ds_rd":
                    break
                j += 1
            self.ops[j].append(op)
            self.excl[j] = True
            self.slots[j] = 2
        else:
            while j < nm and (self.excl[j] or self.slots[j] >= 2):
                j += 1
            self.ops[j].append(op)
            self.slots[j] += 1
        return j

    def reserve(self, j):
        if 0 <= j < self.nm and not self.ops[j]:
            self.excl[j] = True

    def track(self, ops, j0, j1):
        n = len(ops)
        cur = j0
        span = max(j1 - j0, 1)
        last = j0
        for k, op in enumerate(ops):
            jm = max(cur, j0 + (k * span) // n)
            cur = self.place(op, jm)
            last = cur
        return last


def epi_unit(l, tl_pair, u, tset, bset, last):
    p = tl_pair
    ops = []
    r = tset
    f = tset + 4
    X = x0p_pair(u, p)
    for j in range(4):
        ops.append(op_valu("v_accvgpr_read_b32 v%d, a%d" % (r + j, X + j), A(X + j), V(r + j)))
    for half in range(2):
        a = acc(u, 2 * p + half)
        for j in range(2):
            src = r + 2 * half + j
            ops.append(op_valu("v_lshlrev_b32 v%d, 16, v%d" % (f + 2 * j, src), V(src), V(f + 2 * j)))
            ops.append(op_valu("v_and_b32 v%d, 0xffff0000, v%d" % (f + 2 * j + 1, src), V(src), V(f + 2 * j + 1)))
        for j in range(4):
            ops.append(op_valu("v_mul_f32 v%d, v%d, v%d" % (f + j, f + j, a + j), V(f + j) + V(a + j), V(f + j)))
        for j in range(2):
            dst = r + 2 * half + j
            ops.append(op_valu("v_cvt_pk_bf16_f32 v%d, v%d, v%d" % (dst, f + 2 * j, f + 2 * j + 1), V(f + 2 * j, 2), V(dst)))
    if not last:
        if p < 3:
            vb = V_EWA if (l + 1) % 2 == 0 else V_EWB
            off = (p * 4 + u) * 1024
        else:
            vb = V_LW
            off = ((p - 3) * 4 + u) * 1024
        ops.append(Op("ds_write_b128 v%d, %s offset:%d" % (vb, vr(r), off), "ds_wr", V(r, 4) + V(vb), ()))
        for half in range(2):
            a = acc(u, 2 * p + half)
            for j in range(4):
                b = bset + 4 * half + j
                ops.append(op_valu("v_add_f32 v%d, v%d, v%d" % (a + j, a + j, b), V(a + j) + V(b), V(a + j)))
    else:
        so = "0" if u == 0 else "s%d" % S_U[u]
        if P.DEFER and p < 3:
            for j in range(4):
                ops.append(op_valu("v_accvgpr_write_b32 a%d, v%d" % (X + j, r + j), V(r + j), A(X + j)))
            deferred.append(Op("buffer_store_dwordx4 %s, v%d, %s, %s offen offset:%d" % (ar(X), V_GP, srd(S_OUT), so, 64 * p),
                               "vm_st", A(X, 4) + V(V_GP), ()))
        else:
            ops.append(Op("buffer_store_dwordx4 %s, v%d, %s, %s offen offset:%d" % (vr(r), V_GP, srd(S_OUT), so, 64 * p),
                          "vm_st", V(r, 4) + V(V_GP), ()))
    return ops


def epi_unit_single(l, u, tset, bset, last):
    ops = []
    r = tset
    f = tset + 4
    X = x0p_single(u)
    for j in range(2):
        ops.append(op_valu("v_accvgpr_read_b32 v%d, a%d" % (r + j, X + j), A(X + j), V(r + j)))
    a = acc(u, 12)
    for j in range(2):
        ops.append(op_valu("v_lshlrev_b32 v%d, 16, v%d" % (f + 2 * j, r + j), V(r + j), V(f + 2 * j)))
        ops.append(op_valu("v_and_b32 v%d, 0xffff0000, v%d" % (f + 2 * j + 1, r + j), V(r + j), V(f + 2 * j + 1)))
    for j in range(4):
        ops.append(op_valu("v_mul_f32 v%d, v%d, v%d" % (f + j, f + j, a + j), V(f + j) + V(a + j), V(f + j)))
    for j in range(2):
        ops.append(op_valu("v_cvt_pk_bf16_f32 v%d, v%d, v%d" % (r + j, f + 2 * j, f + 2 * j + 1), V(f + 2 * j, 2), V(r + j)))
    if not last:
        vb = V_ESA if (l + 1) % 2 == 0 else V_ESB
        ops.append(Op("ds_write_b64 v%d, %s offset:%d" % (vb, vr(r, 2), u * 1024), "ds_wr", V(r, 2) + V(vb), ()))
        for j in range(4):
            b = bset + j
            ops.append(op_valu("v_add_f32 v%d, v%d, v%d" % (a + j, a + j, b), V(a + j) + V(b), V(a + j)))
    else:
        so = "0" if u == 0 else "s%d" % S_U[u]
        if P.DEFER:
            for j in range(2):
                ops.append(op_valu("v_accvgpr_write_b32 a%d, v%d" % (X + j, r + j), V(r + j), A(X + j)))
            deferred.append(Op("buffer_store_dwordx2 %s, v%d, %s, %s offen" % (ar(X, 2), V_GS, srd(S_OUT), so),
                               "vm_st", A(X, 2) + V(V_GS), ()))
        else:
            ops.append(Op("buffer_store_dwordx2 %s, v%d, %s, %s offen" % (vr(r, 2), V_GS, srd(S_OUT), so),
                          "vm_st", V(r, 2) + V(V_GS), ()))
    return ops


def bias_load(l, tl, dst):
    return Op("buffer_load_dwordx4 %s, v%d, %s, 0 offen offset:%d" % (vr(dst), V_VB, srd(S_BI), (l * 13 + tl) * 64),
              "vm_ld", V(V_VB), V(dst, 4))


def epi_group(l, g, last, ctr):
    ops = []
    items = []
    if g == 0:
        items = ["s", 0, 1, 2]
    else:
        items = [3, 4, 5]
    def bias_ops(item, bset):
        if last:
            return []
        if item == "s":
            return [bias_load(l + 1, 12, bset)]
        return [bias_load(l + 1, 2 * item, bset), bias_load(l + 1, 2 * item + 1, bset + 4)]
    bsets = []
    for k, item in enumerate(items):
        bsets.append(BI_SETS[(ctr[1] + k) % 2])
    pre = bias_ops(items[0], bsets[0])
    for k, item in enumerate(items):
        if k + 1 < len(items):
            nxt = bias_ops(items[k + 1], bsets[k + 1])
        else:
            nxt = []
        first = True
        for u in range(4):
            tset = EP_SETS[ctr[0] % 2]
            ctr[0] += 1
            if item == "s":
                uo = epi_unit_single(l, u, tset, bsets[k], last)
            else:
                uo = epi_unit(l, item, u, tset, bsets[k], last)
            if first:
                ops += nxt
                first = False
            ops += uo
    ctr[1] += len(items)
    return pre, ops


def gen_main():
    D = P.D
    em = Emitter()
    e = em.raw
    em.label(KNAME)
    e("s_cmp_ge_u32 s2, 256")
    e("s_cbranch_scc1 L_done")
    e("s_load_dwordx2 s[4:5], s[0:1], 0")
    e("s_load_dwordx2 s[6:7], s[0:1], 24")
    e("s_load_dwordx2 s[8:9], s[0:1], 40")
    T = 16
    e("v_and_b32 v1, 63, v0")
    e("v_lshrrev_b32 v%d, 6, v0" % T)
    e("s_nop 1")
    e("v_readfirstlane_b32 s%d, v%d" % (S_W, T))
    e("v_lshlrev_b32 v%d, 4, v1" % V_L16)
    e("v_lshrrev_b32 v%d, 4, v1" % (T + 1))
    e("v_and_b32 v%d, 15, v1" % (T + 2))
    e("v_add_u32 v%d, %d, v%d" % (V_XB1, R_B, V_L16))
    e("v_add_u32 v%d, %d, v%d" % (V_XB2, R_C, V_L16))
    e("s_lshl_b32 s%d, s%d, 10" % (S_W1024, S_W))
    e("s_mul_i32 s44, s%d, 12288" % S_W)
    e("v_add_u32 v%d, s44, v%d" % (V_EWA, V_L16))
    e("v_add_u32 v%d, %d, v%d" % (V_EWB, R_B, V_EWA))
    e("v_add_u32 v%d, %d, v%d" % (V_LW, R_C, V_EWA))
    e("s_lshr_b32 s45, s%d, 1" % S_W)
    e("s_and_b32 s46, s%d, 1" % S_W)
    e("s_add_u32 s47, s45, 12")
    e("s_lshl_b32 s47, s47, 12")
    e("s_lshl_b32 s48, s46, 3")
    e("s_add_u32 s47, s47, s48")
    e("v_add_u32 v%d, s47, v%d" % (V_ESA, V_L16))
    e("v_add_u32 v%d, %d, v%d" % (V_ESB, R_B, V_ESA))
    e("s_mul_i32 s37, s2, 106496")
    e("v_mul_u32_u24 v%d, 0x680, v%d" % (T + 3, T + 2))
    e("v_lshl_add_u32 v%d, v%d, 4, v%d" % (T + 3, T + 1, T + 3))
    e("v_add_u32 v%d, s37, v%d" % (T + 3, T + 3))
    e("s_mul_i32 s44, s%d, 384" % S_W)
    e("v_add_u32 v%d, s44, v%d" % (V_GP, T + 3))
    e("s_add_u32 s47, s45, 24")
    e("s_lshl_b32 s47, s47, 6")
    e("s_add_u32 s47, s47, s48")
    e("v_add_u32 v%d, s47, v%d" % (V_GS, T + 3))
    e("v_lshlrev_b32 v%d, 4, v%d" % (V_VB, T + 1))
    e("s_mul_i32 s44, s%d, 26624" % S_W)
    e("v_add_u32 v%d, s44, v%d" % (V_DMA, T + 3))
    e("s_mov_b32 s40, 26624")
    e("s_mov_b32 s41, 53248")
    e("s_mov_b32 s42, 79872")
    e("s_waitcnt lgkmcnt(0)")
    for (sb, sp, nbytes) in ((S_X0, 4, XBYTES), (S_OUT, 6, XBYTES)):
        e("s_mov_b32 s%d, s%d" % (sb, sp))
        e("s_mov_b32 s%d, s%d" % (sb + 1, sp + 1))
        e("s_mov_b32 s%d, %d" % (sb + 2, nbytes))
        e("s_mov_b32 s%d, 0x00020000" % (sb + 3))
    e("s_mul_i32 s44, s%d, %d" % (S_W, WAVE_STREAM))
    e("s_add_u32 s%d, s8, s44" % S_WP)
    e("s_addc_u32 s%d, s9, 0" % (S_WP + 1))
    e("s_mov_b32 s%d, %d" % (S_WP + 2, WAVE_STREAM))
    e("s_mov_b32 s%d, 0x00020000" % (S_WP + 3))
    e("s_mul_i32 s44, s%d, %d" % (S_W, BIAS_WAVE))
    e("s_add_u32 s44, s44, %d" % WBYTES)
    e("s_add_u32 s%d, s8, s44" % S_BI)
    e("s_addc_u32 s%d, s9, 0" % (S_BI + 1))
    e("s_mov_b32 s%d, %d" % (S_BI + 2, BIAS_WAVE))
    e("s_mov_b32 s%d, 0x00020000" % (S_BI + 3))
    em.stamp()

    M = []
    meta = []
    kstart = {}
    fr = 0
    kk = 0
    frag_first = []
    for l in range(3):
        for g in range(2):
            for i in range(26):
                kstart[(l, g, i)] = len(M)
                for c, tl in enumerate(G_TILES[g]):
                    frag_first.append(len(M))
                    for u in range(4):
                        M.append(op_mfma(u, tl, fr % D, kk % 2))
                        meta.append((l, g, i, c, u))
                    fr += 1
                kk += 1
    NM = len(M)
    S = Sched(NM)
    before = [[] for _ in range(NM + 1)]

    def ring_load_ops(n):
        ops = []
        if n >= FR_WAVE:
            return ops
        if n % 4 == 0:
            ops.append(op_salu("s_mov_b32 s%d, %d" % (S_WOFF, n * 1024)))
        ops.append(Op("buffer_load_dwordx4 %s, v%d, %s, s%d offen offset:%d" % (ar(ring(n % D)), V_L16, srd(S_WP), S_WOFF, (n % 4) * 1024),
                      "vm_ld", V(V_L16), A(ring(n % D), 4), accw=True))
        return ops

    def barrier(reads=()):
        return Op("s_barrier", "barrier", reads, ())

    bar_pos = []

    def add_barrier(j, reads=()):
        before[j].append(barrier(reads))
        S.reserve(j - 1)
        bar_pos.append(j)

    seq = [(l, g, i) for l in range(3) for g in range(2) for i in range(26)]

    AH = P.DMA_AHEAD
    i = 2
    while i < 26:
        chunk = [x for x in (i, i + 1) if x < 26]
        add_barrier(kstart[(0, 0, i - 1)], ["L:dma%d" % x for x in chunk])
        i += 2
    for l in range(2):
        add_barrier(kstart[(l, 1, 25)])
        add_barrier(kstart[(l + 1, 0, 13)])

    cur = 0
    for n in range(FR_WAVE):
        jm = max(frag_first[n] + 3 + P.RLAG, cur)
        for op in ring_load_ops(n + D):
            cur = S.place(op, jm)
            jm = cur

    def xfrag_reads(l, i, buf):
        ops = []
        for u in range(4):
            vb, off = lds_ref(xblock_addr(l, i, u))
            ops.append(Op("ds_read_b128 %s, v%d offset:%d" % (ar(xfrag(buf, u)), vb, off), "ds_rd", V(vb), A(xfrag(buf, u), 4)))
        return ops

    for k in range(len(seq) - 1):
        l, g, i = seq[k]
        l2, g2, i2 = seq[k + 1]
        cur = kstart[(l, g, i)] + 1
        for op in xfrag_reads(l2, i2, (k + 1) % 2):
            cur = S.place(op, cur)
        assert cur < kstart[(l, g, i)] + 4 * len(G_TILES[g]) - 2, (l, g, i, cur)

    def dma_ops(i):
        la = R_A + i * 4096 if i < 14 else R_C + (i - 14) * 4096
        return [op_salu("s_add_u32 m0, s%d, %d" % (S_W1024, la)),
                op_salu("s_mov_b32 s%d, %d" % (S_DOFF, 64 * KT(i))),
                Op("buffer_load_dwordx4 v%d, %s, s%d offen lds" % (V_DMA, srd(S_X0), S_DOFF), "dma", V(V_DMA), ["L:dma%d" % i])]

    cur = 0
    B_ = P.DMAB
    for i in range(AH, 26):
        ks = ((i - AH) // B_) * B_
        jm = max(cur, kstart[(0, 0, ks)])
        for op in dma_ops(i):
            cur = S.place(op, jm)
            jm = cur
        assert cur < kstart[(0, 0, i - 3)], (i, cur)

    def x0p_ops(g):
        ops = []
        if g == 0:
            for u in range(4):
                ops.append(Op("ds_read_b64 %s, v%d offset:%d" % (ar(x0p_single(u), 2), V_ESA, u * 1024), "ds_rd", V(V_ESA), A(x0p_single(u), 2)))
            for p in range(3):
                for u in range(4):
                    ops.append(Op("ds_read_b128 %s, v%d offset:%d" % (ar(x0p_pair(u, p)), V_EWA, (p * 4 + u) * 1024), "ds_rd", V(V_EWA), A(x0p_pair(u, p), 4)))
        else:
            for p in range(3, 6):
                for u in range(4):
                    ops.append(Op("ds_read_b128 %s, v%d offset:%d" % (ar(x0p_pair(u, p)), V_LW, ((p - 3) * 4 + u) * 1024), "ds_rd", V(V_LW), A(x0p_pair(u, p), 4)))
        return ops
    S.track(x0p_ops(0), kstart[(0, 0, 15)], kstart[(0, 0, 24)])
    S.track(x0p_ops(1), kstart[(0, 1, 2)], kstart[(0, 1, 12)])

    def acc_init_ops(tiles):
        ops = []
        for tl in tiles:
            a0 = acc(0, tl)
            for u in (3, 2, 1, 0):
                a = acc(u, tl)
                for j in range(4):
                    ops.append(op_valu("v_add_f32 v%d, 1.0, v%d" % (a + j, a0 + j), V(a0 + j), V(a + j)))
        return ops

    ctr = [0, 0]
    tail_ops = []
    for l in range(3):
        last = (l == 2)
        pre, ops = epi_group(l, 0, last, ctr)
        endp = S.track(pre + ops, kstart[(l, 1, 0)] + 10, kstart[(l, 1, P.E0END)])
        if not last:
            assert endp < kstart[(l, 1, 25)] - 1, ("G0 epilogue overflow", l, endp, kstart[(l, 1, 25)])
        pre, ops = epi_group(l, 1, last, ctr)
        if not last:
            cur = kstart[(l, 1, 23)]
            for op in pre:
                cur = S.place(op, cur)
            assert cur < kstart[(l + 1, 0, 0)]
            endp = S.track(ops, kstart[(l + 1, 0, 0)] + 10, kstart[(l + 1, 0, P.E1END)])
            assert endp < kstart[(l + 1, 0, 13)] - 1, ("G1 epilogue overflow", l, endp, kstart[(l + 1, 0, 13)])
        else:
            tail_ops = ops
    S.track(acc_init_ops(G_TILES[1]), kstart[(0, 0, 8)], kstart[(0, 0, 22)])

    E = em.emit
    nr = 0
    for i in range(2):
        for op in dma_ops(i):
            E(op)
    for tl in G_TILES[0]:
        E(bias_load(0, tl, acc(0, tl)))
    while nr < min(14, D):
        for op in ring_load_ops(nr):
            E(op)
        nr += 1
    for i in range(2, 4):
        for op in dma_ops(i):
            E(op)
    while nr < D:
        for op in ring_load_ops(nr):
            E(op)
        nr += 1
    for i in range(4, AH):
        for op in dma_ops(i):
            E(op)
    for tl in G_TILES[1]:
        E(bias_load(0, tl, acc(0, tl)))
    for op in acc_init_ops(G_TILES[0]):
        E(op)
    E(barrier(["L:dma0", "L:dma1"]))
    em.stamp()
    for op in xfrag_reads(0, 0, 0):
        E(op)
    for j in range(NM):
        l, g, i, c, u = meta[j]
        if P.STAMPS and i == 0 and c == 0 and u == 0:
            em.stamp()
        for op in before[j]:
            E(op)
        E(M[j])
        for op in S.ops[j]:
            E(op)
    for op in S.ops[NM]:
        E(op)
    em.stamp()
    for op in deferred:
        E(op)
    for op in tail_ops:
        E(op)
    em.dump_stamps()
    em.label("L_done")
    e("s_endpgm")
    sys.stderr.write("main: %d instrs, waits %d, nops %d\n" % (em.n, em.stats["waits"], em.stats["nops"]))
    return "\n".join(em.out) + "\n"


KD = """.section .rodata,"a"
.p2align 6
.amdhsa_kernel {name}
  .amdhsa_next_free_vgpr {vgpr}
  .amdhsa_next_free_sgpr {sgpr}
  .amdhsa_accum_offset {acco}
  .amdhsa_group_segment_fixed_size 0
  .amdhsa_kernarg_size 48
  .amdhsa_user_sgpr_count 2
  .amdhsa_user_sgpr_kernarg_segment_ptr 1
  .amdhsa_system_sgpr_workgroup_id_x 1
.end_amdhsa_kernel
"""


def main():
    args = sys.argv[1:]
    path = "standalone__cross_network_dcn__recsys.s"
    for a in args:
        if a == "--stamps":
            P.STAMPS = True
        elif a.startswith("--D="):
            P.D = int(a[4:])
        elif a.startswith("--LA="):
            P.LA = int(a[5:])
        elif a.startswith("--AH="):
            P.DMA_AHEAD = int(a[5:])
        elif a == "--defer":
            P.DEFER = True
        elif a.startswith("--DMAB="):
            P.DMAB = int(a[7:])
        elif a.startswith("--E0="):
            P.E0END = int(a[5:])
        elif a.startswith("--E1="):
            P.E1END = int(a[5:])
        else:
            path = a
    assert 4 * P.D + 32 + 104 <= 256
    out = HEADER
    out += "; @launch kernel=dcn_prep_kernel grid=(312,1,1) block=(832,1,1) lds=0\n"
    out += "; @launch kernel=%s grid=(256,1,1) block=(256,1,1) lds=%d\n" % (KNAME, LDS_BYTES)
    out += '.amdgcn_target "amdgcn-amd-amdhsa--gfx950"\n.text\n'
    out += ".globl dcn_prep_kernel\n.p2align 8\n.type dcn_prep_kernel,@function\n"
    out += gen_prep()
    out += ".globl %s\n.p2align 8\n.type %s,@function\n" % (KNAME, KNAME)
    out += gen_main()
    out += KD.format(name="dcn_prep_kernel", vgpr=72, sgpr=56, acco=72)
    out += KD.format(name=KNAME, vgpr=256 + 4 * P.D + 136, sgpr=96, acco=256)
    open(path, "w").write(out)


if __name__ == "__main__":
    main()
```

```python
import sys

HEADER = """; Kernarg layout for this problem (48 bytes, ptrs only, base s[0:1]):
;   offset  40: d_ws      268435456 bytes workspace (unspecified values whenever your kernel or launch list starts; a list's later launches find what earlier ones wrote)
"""

KNAME = "standalone__cross_network_dcn__recsys_kernel"
WBYTES = 3 * 832 * 832 * 2
XBYTES = 16384 * 832 * 2
FR_LAYER = 338
FR_WAVE = 3 * FR_LAYER
WAVE_STREAM = FR_WAVE * 1024
BIAS_WAVE = 3 * 13 * 64
BIAS_BYTES = 4 * BIAS_WAVE
R_A, R_B, R_C = 0, 106496, 57344
LDS_BYTES = 163840

G_TILES = [[12, 0, 1, 2, 3, 4, 5], [6, 7, 8, 9, 10, 11]]


def KT(i):
    if i < 12:
        return 6 * (i // 3) + i % 3
    if i < 14:
        return 24 + (i - 12)
    j = i - 14
    return 6 * (j // 3) + 3 + j % 3


class P:
    D = 28
    LA = 6
    STAMPS = False
    DMA_AHEAD = 8
    DEFER = False
    BURST = True
    INIT_RING = 14
    PREFETCH = False
    DMAB = 1
    RLAG = 1
    E0END = 24
    E1END = 12


def acc(u, tl):
    return 48 + (tl * 4 + u) * 4


def ring(slot):
    return slot * 4


def XF0():
    return 4 * P.D


def xfrag(buf, u):
    return XF0() + (buf * 4 + u) * 4


def X0P0():
    return XF0() + 32


def x0p_pair(u, p):
    return X0P0() + (p * 4 + u) * 4


def x0p_single(u):
    return X0P0() + 96 + 2 * u


V_L16, V_XB1, V_XB2 = 2, 3, 4
V_EWA, V_EWB, V_ESA, V_ESB, V_LW = 5, 6, 7, 8, 9
V_GP, V_GS, V_VB, V_DMA = 10, 11, 12, 13
V_TMP = 14
V_X0R = [[0, 1], [46, 47]]
V_XV, V_XS = 24, 32
V_LANE_T = 23
EP_SETS = [14, 22]
BI_SETS = [30, 38]

S_X0, S_WP, S_BI, S_OUT = 16, 20, 24, 28
S_W, S_W1024, S_WOFF, S_DOFF = 32, 33, 34, 35
S_U = [None, 40, 41, 42]


def V(b, n=1):
    return ["v%d" % (b + i) for i in range(n)]


def A(b, n=1):
    return ["a%d" % (b + i) for i in range(n)]


def vr(b, n=4):
    return "v[%d:%d]" % (b, b + n - 1) if n > 1 else "v%d" % b


def ar(b, n=4):
    return "a[%d:%d]" % (b, b + n - 1) if n > 1 else "a%d" % b


def srd(b):
    return "s[%d:%d]" % (b, b + 3)


class Op:
    __slots__ = ("text", "kind", "reads", "writes", "accw")

    def __init__(self, text, kind, reads=(), writes=(), accw=False):
        self.text = text
        self.kind = kind
        self.reads = frozenset(reads)
        self.writes = frozenset(writes)
        self.accw = accw


def op_mfma(u, tl, slot, buf):
    a = acc(u, tl)
    return Op("v_mfma_f32_16x16x32_bf16 %s, %s, %s, %s" % (vr(a), ar(ring(slot)), ar(xfrag(buf, u)), vr(a)), "mfma",
              V(a, 4) + A(ring(slot), 4) + A(xfrag(buf, u), 4), V(a, 4))


def op_valu(text, reads, writes):
    return Op(text, "valu", reads, writes)


def op_salu(text):
    return Op(text, "salu")


def lds_ref(addr):
    if addr < R_C:
        return V_L16, addr
    if addr < R_B:
        return V_XB2, addr - R_C
    return V_XB1, addr - R_B


def ereg(l):
    return R_A if l % 2 == 0 else R_B


def xblock_addr(l, i, u):
    if i < 14:
        return ereg(l) + (i * 4 + u) * 1024
    return R_C + ((i - 14) * 4 + u) * 1024


class Emitter:
    def __init__(self):
        self.out = []
        self.n = 0
        self.vmq = []
        self.lgq = []
        self.last_mfma_w = {}
        self.last_valu_w = {}
        self.last_store_r = {}
        self.last_m0 = -100
        self.nstamp = 0
        self.stats = {"waits": 0, "nops": 0}

    def raw(self, text):
        self.out.append("    " + text)
        self.n += 1

    def comment(self, text):
        self.out.append("    ; " + text)

    def label(self, l):
        self.out.append(l + ":")

    def _wait_q(self, q, regs, la):
        pos = -1
        for i, (w, tag) in enumerate(q):
            if w and not w.isdisjoint(regs):
                pos = i
        return pos

    def emit(self, op):
        regs = op.reads | op.writes
        vm_pos = self._wait_q(self.vmq, regs, 0)
        lg_pos = self._wait_q(self.lgq, regs, 0)
        if op.kind == "barrier":
            lg_pos = len(self.lgq) - 1
        wparts = []
        if vm_pos >= 0:
            p = vm_pos
            k = 0
            while k < P.LA and p + 1 < len(self.vmq) and self.vmq[p + 1][1] == "ring" and len(self.vmq) - (p + 2) >= P.D - 9:
                p += 1
                k += 1
            cnt = len(self.vmq) - 1 - p
            assert cnt <= 63
            wparts.append("vmcnt(%d)" % cnt)
            del self.vmq[: p + 1]
        if lg_pos >= 0:
            k = 0
            while k < 3 and lg_pos + 1 < len(self.lgq) and self.lgq[lg_pos + 1][1] == "rd":
                lg_pos += 1
                k += 1
            cnt = len(self.lgq) - 1 - lg_pos
            assert cnt <= 15, cnt
            wparts.append("lgkmcnt(%d)" % cnt)
            del self.lgq[: lg_pos + 1]
        if wparts:
            self.raw("s_waitcnt " + " ".join(wparts))
            self.stats["waits"] += 1
        need = 0
        if op.kind in ("valu", "ds_wr", "vm_st", "ds_rd", "vm_ld", "dma"):
            for r in regs:
                if r in self.last_mfma_w:
                    need = max(need, 9 - (self.n - self.last_mfma_w[r]))
        if op.kind == "valu":
            for r in op.writes:
                if r in self.last_store_r:
                    need = max(need, 3 - (self.n - self.last_store_r[r]))
        if op.kind in ("vm_ld", "ds_rd"):
            for r in op.writes:
                if r in self.last_store_r:
                    need = max(need, 3 - (self.n - self.last_store_r[r]))
        if op.kind == "mfma":
            for r in op.reads:
                if r in self.last_valu_w:
                    need = max(need, 3 - (self.n - self.last_valu_w[r]))
        if op.kind == "dma":
            need = max(need, 2 - (self.n - self.last_m0))
        while need > 0:
            k = min(need, 8)
            self.raw("s_nop %d" % (k - 1))
            self.n += k - 1
            need -= k
            self.stats["nops"] += 1
        self.raw(op.text)
        idx = self.n - 1
        if op.kind == "mfma":
            for r in op.writes:
                self.last_mfma_w[r] = idx
        elif op.kind == "valu":
            for r in op.writes:
                self.last_valu_w[r] = idx
                self.last_mfma_w.pop(r, None)
        if op.kind in ("ds_wr", "vm_st"):
            for r in op.reads:
                self.last_store_r[r] = idx
        if op.kind == "salu" and "m0," in op.text:
            self.last_m0 = idx
        if op.kind in ("vm_ld", "dma", "vm_st"):
            while len(self.vmq) >= 63:
                self.vmq.pop(0)
        if op.kind in ("vm_ld",):
            self.vmq.append((op.writes, "ring" if op.accw else "ld"))
        elif op.kind == "dma":
            self.vmq.append((op.writes, "dma"))
        elif op.kind == "vm_st":
            self.vmq.append((frozenset(), "st"))
        elif op.kind == "ds_rd":
            self.lgq.append((op.writes, "rd"))
            assert len(self.lgq) <= 15
        elif op.kind == "ds_wr":
            self.lgq.append((frozenset(), "wr"))
            assert len(self.lgq) <= 15

    def stamp(self):
        if not P.STAMPS or self.nstamp >= 14:
            return
        k = 50 + 2 * self.nstamp
        self.raw("s_waitcnt lgkmcnt(0)")
        self.lgq = []
        self.raw("s_memtime s[%d:%d]" % (k, k + 1))
        if self.nstamp == 0:
            self.raw("s_memrealtime s[84:85]")
        self.raw("s_waitcnt lgkmcnt(0)")
        self.nstamp += 1

    def dump_stamps(self):
        if not P.STAMPS:
            return
        self.raw("s_waitcnt vmcnt(0) lgkmcnt(0)")
        self.vmq = []
        self.lgq = []
        self.stamp()
        self.raw("s_memrealtime s[86:87]")
        self.raw("s_waitcnt lgkmcnt(0)")
        self.raw("s_lshl_b32 s44, s2, 2")
        self.raw("s_add_u32 s44, s44, s%d" % S_W)
        self.raw("s_lshl_b32 s44, s44, 6")
        self.raw("s_add_u32 s44, s44, %d" % (16 << 20))
        self.raw("s_mov_b32 s92, s8")
        self.raw("s_mov_b32 s93, s9")
        self.raw("s_mov_b32 s94, %d" % ((16 << 20) + 65536))
        self.raw("s_mov_b32 s95, 0x00020000")
        self.raw("s_mov_b64 exec, 1")
        self.raw("v_mov_b32 v17, 0")
        for i in range(self.nstamp):
            self.raw("v_mov_b32 v16, s%d" % (50 + 2 * i))
            self.raw("buffer_store_dword v16, v17, s[92:95], s44 offen offset:%d" % (4 * i))
            self.raw("s_nop 1")
        self.raw("v_mov_b32 v16, s84")
        self.raw("buffer_store_dword v16, v17, s[92:95], s44 offen offset:56")
        self.raw("s_nop 1")
        self.raw("v_mov_b32 v16, s86")
        self.raw("buffer_store_dword v16, v17, s[92:95], s44 offen offset:60")
        self.raw("s_mov_b64 exec, -1")


def gen_prep():
    L = []
    e = L.append
    e("dcn_prep_kernel:")
    if P.PREFETCH:
        e("s_cmp_ge_u32 s2, 568")
        e("s_cbranch_scc1 L_prep_done")
        e("s_cmp_ge_u32 s2, 312")
        e("s_cbranch_scc1 L_prep_pf")
    else:
        e("s_cmp_ge_u32 s2, 312")
        e("s_cbranch_scc1 L_prep_done")
    if P.STAMPS:
        e("s_memrealtime s[40:41]")
    e("s_load_dwordx2 s[4:5], s[0:1], 8")
    e("s_load_dwordx2 s[6:7], s[0:1], 40")
    e("s_load_dwordx2 s[8:9], s[0:1], 16")
    e("s_mov_b32 s10, 41297763")
    e("s_mul_hi_u32 s11, s2, s10")
    e("s_mul_i32 s12, s11, 104")
    e("s_sub_u32 s12, s2, s12")
    e("s_lshr_b32 s13, s12, 2")
    e("s_and_b32 s14, s12, 3")
    e("v_lshlrev_b32 v56, 1, v0")
    e("v_add_u32 v57, 4992, v56")
    e("v_add_u32 v58, 9984, v56")
    e("s_mul_i32 s36, s11, 832")
    e("s_lshl_b32 s37, s13, 5")
    e("s_add_u32 s36, s36, s37")
    e("s_lshl_b32 s37, s14, 3")
    e("s_add_u32 s36, s36, s37")
    e("s_mul_i32 s36, s36, 1664")
    e("s_mul_i32 s38, s11, 1664")
    e("s_waitcnt lgkmcnt(0)")
    e("s_mov_b32 s24, s4")
    e("s_mov_b32 s25, s5")
    e("s_mov_b32 s26, %d" % WBYTES)
    e("s_mov_b32 s27, 0x00020000")
    e("s_mov_b32 s32, s8")
    e("s_mov_b32 s33, s9")
    e("s_mov_b32 s34, 4992")
    e("s_mov_b32 s35, 0x00020000")
    data = 20
    srcs = [(56, 0), (56, 1664), (56, 3328), (57, 0), (57, 1664), (57, 3328), (58, 0), (58, 1664)]
    for j, (va, off) in enumerate(srcs):
        e("buffer_load_ushort v%d, v%d, s[24:27], s36 offen offset:%d" % (data + j, va, off))
    e("buffer_load_ushort v68, v56, s[32:35], s38 offen")
    e("s_mul_i32 s16, s13, 43")
    e("s_lshr_b32 s16, s16, 8")
    e("s_mul_i32 s17, s16, 6")
    e("s_sub_u32 s17, s13, s17")
    e("s_mul_i32 s18, s16, 3")
    e("s_add_u32 s18, s18, s17")
    e("s_add_u32 s19, s18, 11")
    e("s_cmp_ge_u32 s17, 3")
    e("s_cselect_b32 s18, s19, s18")
    e("s_sub_u32 s19, s13, 12")
    e("s_cmp_ge_u32 s13, 24")
    e("s_cselect_b32 s18, s19, s18")
    e("s_mul_i32 s20, s18, 7")
    e("s_mul_i32 s21, s18, 6")
    e("s_add_u32 s21, s21, 182")
    e("s_mul_i32 s22, s11, 338")
    e("s_add_u32 s20, s20, s22")
    e("s_add_u32 s21, s21, s22")
    e("s_lshl_b32 s23, s14, 4")
    e("s_mov_b32 s28, s6")
    e("s_mov_b32 s29, s7")
    e("s_mov_b32 s30, %d" % (WBYTES + BIAS_BYTES))
    e("s_mov_b32 s31, 0x00020000")
    e("s_mul_i32 s39, s11, 832")
    e("s_add_u32 s39, s39, %d" % WBYTES)
    E = 0
    D = 60
    e("v_lshrrev_b32 v11, 5, v%d" % E)
    e("v_bfe_u32 v12, v%d, 3, 2" % E)
    e("v_bfe_u32 v13, v%d, 2, 1" % E)
    e("v_and_b32 v14, 3, v%d" % E)
    e("v_mul_u32_u24 v15, 43, v11")
    e("v_lshrrev_b32 v15, 8, v15")
    e("v_mul_u32_u24 v16, 6, v15")
    e("v_sub_u32 v16, v11, v16")
    e("v_lshl_add_u32 v17, v16, 1, v13")
    e("v_add_u32 v18, 1, v17")
    e("v_add_u32 v18, s20, v18")
    e("v_subrev_u32 v19, 6, v17")
    e("v_add_u32 v19, s21, v19")
    e("v_cmp_le_u32 vcc, 3, v16")
    e("s_nop 1")
    e("v_cndmask_b32 v18, v18, v19, vcc")
    e("v_subrev_u32 v19, 24, v11")
    e("v_lshl_add_u32 v19, v19, 1, v13")
    e("v_cmp_le_u32 vcc, 24, v11")
    e("s_nop 1")
    e("v_cndmask_b32 v15, v15, v19, vcc")
    e("v_mov_b32 v19, s20")
    e("v_cndmask_b32 v18, v18, v19, vcc")
    e("v_mov_b32 v19, 12")
    e("v_cndmask_b32 v17, v17, v19, vcc")
    e("v_mul_u32_u24 v19, 1014, v15")
    e("v_add_u32 v19, v19, v18")
    e("v_lshlrev_b32 v19, 10, v19")
    e("v_lshl_add_u32 v%d, v12, 2, v14" % D)
    e("v_add_u32 v%d, s23, v%d" % (D, D))
    e("v_lshl_add_u32 v%d, v%d, 4, v19" % (D, D))
    e("v_mul_u32_u24 v64, 2496, v15")
    e("v_lshl_add_u32 v64, v17, 6, v64")
    e("v_lshl_add_u32 v64, v12, 4, v64")
    e("v_lshl_add_u32 v64, v14, 2, v64")
    e("s_waitcnt vmcnt(0)")
    for j in range(4):
        e("v_lshl_or_b32 v%d, v%d, 16, v%d" % (data + j, data + 2 * j + 1, data + 2 * j))
    e("buffer_store_dwordx4 v[%d:%d], v%d, s[28:31], 0 offen" % (data, data + 3, D))
    if P.STAMPS:
        e("s_waitcnt vmcnt(0)")
        e("s_memrealtime s[42:43]")
        e("s_waitcnt lgkmcnt(0)")
        e("s_mov_b32 s44, s6")
        e("s_mov_b32 s45, s7")
        e("s_mov_b32 s46, %d" % ((24 << 20)))
        e("s_mov_b32 s47, 0x00020000")
        e("s_lshl_b32 s48, s2, 3")
        e("s_add_u32 s48, s48, %d" % (20 << 20))
        e("v_mov_b32 v1, 0")
        e("v_mov_b32 v2, s40")
        e("v_mov_b32 v3, s42")
        e("s_mov_b64 exec, 1")
        e("buffer_store_dwordx2 v[2:3], v1, s[44:47], s48 offen")
        e("s_mov_b64 exec, -1")
    e("s_cmp_lg_u32 s12, 0")
    e("s_cbranch_scc1 L_prep_done")
    e("v_lshlrev_b32 v68, 16, v68")
    e("buffer_store_dword v68, v64, s[28:31], s39 offen")
    if P.PREFETCH:
        e("s_endpgm")
        e("L_prep_pf:")
        e("s_load_dwordx2 s[4:5], s[0:1], 0")
        e("s_sub_u32 s10, s2, 312")
        e("s_mul_i32 s10, s10, 106496")
        e("v_lshlrev_b32 v1, 4, v0")
        e("s_waitcnt lgkmcnt(0)")
        e("s_mov_b32 s24, s4")
        e("s_mov_b32 s25, s5")
        e("s_mov_b32 s26, %d" % XBYTES)
        e("s_mov_b32 s27, 0x00020000")
        for k in range(8):
            e("buffer_load_dwordx4 v[%d:%d], v1, s[24:27], s10 offen" % (20 + 4 * k, 23 + 4 * k))
            e("s_add_u32 s10, s10, 13312")
        e("s_waitcnt vmcnt(0)")
    e("L_prep_done:")
    e("s_endpgm")
    return "\n".join(("    " + x) if not x.endswith(":") else x for x in L) + "\n"


deferred = []


class Sched:
    MEM = ("vm_ld", "ds_rd", "ds_wr", "vm_st", "dma")

    def __init__(self, nm):
        self.nm = nm
        self.ops = [[] for _ in range(nm + 1)]
        self.slots = [0] * (nm + 1)
        self.excl = [False] * (nm + 1)
        self.overflow = 0

    def place(self, op, jmin):
        j = max(jmin, 0)
        nm = self.nm
        if op.kind in self.MEM:
            while j < nm:
                if not self.ops[j]:
                    break
                if op.kind == "ds_rd" and len(self.ops[j]) == 1 and self.ops[j][0].kind == "ds_rd":
                    break
                j += 1
            self.ops[j].append(op)
            self.excl[j] = True
            self.slots[j] = 2
        else:
            while j < nm and (self.excl[j] or self.slots[j] >= 2):
                j += 1
            self.ops[j].append(op)
            self.slots[j] += 1
        return j

    def reserve(self, j):
        if 0 <= j < self.nm and not self.ops[j]:
            self.excl[j] = True

    def track(self, ops, j0, j1):
        n = len(ops)
        cur = j0
        span = max(j1 - j0, 1)
        last = j0
        for k, op in enumerate(ops):
            jm = max(cur, j0 + (k * span) // n)
            cur = self.place(op, jm)
            last = cur
        return last


def epi_unit(l, tl_pair, u, tset, bset, last):
    p = tl_pair
    ops = []
    r = tset
    f = tset + 4
    X = x0p_pair(u, p)
    for j in range(4):
        ops.append(op_valu("v_accvgpr_read_b32 v%d, a%d" % (r + j, X + j), A(X + j), V(r + j)))
    for half in range(2):
        a = acc(u, 2 * p + half)
        for j in range(2):
            src = r + 2 * half + j
            ops.append(op_valu("v_lshlrev_b32 v%d, 16, v%d" % (f + 2 * j, src), V(src), V(f + 2 * j)))
            ops.append(op_valu("v_and_b32 v%d, 0xffff0000, v%d" % (f + 2 * j + 1, src), V(src), V(f + 2 * j + 1)))
        for j in range(4):
            ops.append(op_valu("v_mul_f32 v%d, v%d, v%d" % (f + j, f + j, a + j), V(f + j) + V(a + j), V(f + j)))
        for j in range(2):
            dst = r + 2 * half + j
            ops.append(op_valu("v_cvt_pk_bf16_f32 v%d, v%d, v%d" % (dst, f + 2 * j, f + 2 * j + 1), V(f + 2 * j, 2), V(dst)))
    if not last:
        if p < 3:
            vb = V_EWA if (l + 1) % 2 == 0 else V_EWB
            off = (p * 4 + u) * 1024
        else:
            vb = V_LW
            off = ((p - 3) * 4 + u) * 1024
        ops.append(Op("ds_write_b128 v%d, %s offset:%d" % (vb, vr(r), off), "ds_wr", V(r, 4) + V(vb), ()))
        for half in range(2):
            a = acc(u, 2 * p + half)
            for j in range(4):
                b = bset + 4 * half + j
                ops.append(op_valu("v_add_f32 v%d, v%d, v%d" % (a + j, a + j, b), V(a + j) + V(b), V(a + j)))
    else:
        so = "0" if u == 0 else "s%d" % S_U[u]
        if P.DEFER and p < 3:
            for j in range(4):
                ops.append(op_valu("v_accvgpr_write_b32 a%d, v%d" % (X + j, r + j), V(r + j), A(X + j)))
            deferred.append(Op("buffer_store_dwordx4 %s, v%d, %s, %s offen offset:%d" % (ar(X), V_GP, srd(S_OUT), so, 64 * p),
                               "vm_st", A(X, 4) + V(V_GP), ()))
        else:
            ops.append(Op("buffer_store_dwordx4 %s, v%d, %s, %s offen offset:%d" % (vr(r), V_GP, srd(S_OUT), so, 64 * p),
                          "vm_st", V(r, 4) + V(V_GP), ()))
    return ops


def epi_unit_single(l, u, tset, bset, last):
    ops = []
    r = tset
    f = tset + 4
    X = x0p_single(u)
    for j in range(2):
        ops.append(op_valu("v_accvgpr_read_b32 v%d, a%d" % (r + j, X + j), A(X + j), V(r + j)))
    a = acc(u, 12)
    for j in range(2):
        ops.append(op_valu("v_lshlrev_b32 v%d, 16, v%d" % (f + 2 * j, r + j), V(r + j), V(f + 2 * j)))
        ops.append(op_valu("v_and_b32 v%d, 0xffff0000, v%d" % (f + 2 * j + 1, r + j), V(r + j), V(f + 2 * j + 1)))
    for j in range(4):
        ops.append(op_valu("v_mul_f32 v%d, v%d, v%d" % (f + j, f + j, a + j), V(f + j) + V(a + j), V(f + j)))
    for j in range(2):
        ops.append(op_valu("v_cvt_pk_bf16_f32 v%d, v%d, v%d" % (r + j, f + 2 * j, f + 2 * j + 1), V(f + 2 * j, 2), V(r + j)))
    if not last:
        vb = V_ESA if (l + 1) % 2 == 0 else V_ESB
        ops.append(Op("ds_write_b64 v%d, %s offset:%d" % (vb, vr(r, 2), u * 1024), "ds_wr", V(r, 2) + V(vb), ()))
        for j in range(4):
            b = bset + j
            ops.append(op_valu("v_add_f32 v%d, v%d, v%d" % (a + j, a + j, b), V(a + j) + V(b), V(a + j)))
    else:
        so = "0" if u == 0 else "s%d" % S_U[u]
        if P.DEFER:
            for j in range(2):
                ops.append(op_valu("v_accvgpr_write_b32 a%d, v%d" % (X + j, r + j), V(r + j), A(X + j)))
            deferred.append(Op("buffer_store_dwordx2 %s, v%d, %s, %s offen" % (ar(X, 2), V_GS, srd(S_OUT), so),
                               "vm_st", A(X, 2) + V(V_GS), ()))
        else:
            ops.append(Op("buffer_store_dwordx2 %s, v%d, %s, %s offen" % (vr(r, 2), V_GS, srd(S_OUT), so),
                          "vm_st", V(r, 2) + V(V_GS), ()))
    return ops


def bias_load(l, tl, dst):
    return Op("buffer_load_dwordx4 %s, v%d, %s, 0 offen offset:%d" % (vr(dst), V_VB, srd(S_BI), (l * 13 + tl) * 64),
              "vm_ld", V(V_VB), V(dst, 4))


def epi_group(l, g, last, ctr):
    ops = []
    items = []
    if g == 0:
        items = ["s", 0, 1, 2]
    else:
        items = [3, 4, 5]
    def bias_ops(item, bset):
        if last:
            return []
        if item == "s":
            return [bias_load(l + 1, 12, bset)]
        return [bias_load(l + 1, 2 * item, bset), bias_load(l + 1, 2 * item + 1, bset + 4)]
    bsets = []
    for k, item in enumerate(items):
        bsets.append(BI_SETS[(ctr[1] + k) % 2])
    pre = bias_ops(items[0], bsets[0])
    for k, item in enumerate(items):
        if k + 1 < len(items):
            nxt = bias_ops(items[k + 1], bsets[k + 1])
        else:
            nxt = []
        first = True
        for u in range(4):
            tset = EP_SETS[ctr[0] % 2]
            ctr[0] += 1
            if item == "s":
                uo = epi_unit_single(l, u, tset, bsets[k], last)
            else:
                uo = epi_unit(l, item, u, tset, bsets[k], last)
            if first:
                ops += nxt
                first = False
            ops += uo
    ctr[1] += len(items)
    return pre, ops


def gen_main():
    D = P.D
    em = Emitter()
    e = em.raw
    em.label(KNAME)
    e("s_cmp_ge_u32 s2, 256")
    e("s_cbranch_scc1 L_done")
    e("s_load_dwordx2 s[4:5], s[0:1], 0")
    e("s_load_dwordx2 s[6:7], s[0:1], 24")
    e("s_load_dwordx2 s[8:9], s[0:1], 40")
    T = 16
    e("v_and_b32 v1, 63, v0")
    e("v_lshrrev_b32 v%d, 6, v0" % T)
    e("s_nop 1")
    e("v_readfirstlane_b32 s%d, v%d" % (S_W, T))
    e("v_lshlrev_b32 v%d, 4, v1" % V_L16)
    e("v_mov_b32 v%d, v1" % V_LANE_T)
    e("v_lshrrev_b32 v%d, 4, v1" % (T + 1))
    e("v_and_b32 v%d, 15, v1" % (T + 2))
    e("v_add_u32 v%d, %d, v%d" % (V_XB1, R_B, V_L16))
    e("v_add_u32 v%d, %d, v%d" % (V_XB2, R_C, V_L16))
    e("s_lshl_b32 s%d, s%d, 10" % (S_W1024, S_W))
    e("s_mul_i32 s44, s%d, 12288" % S_W)
    e("v_add_u32 v%d, s44, v%d" % (V_EWA, V_L16))
    e("v_add_u32 v%d, %d, v%d" % (V_EWB, R_B, V_EWA))
    e("v_add_u32 v%d, %d, v%d" % (V_LW, R_C, V_EWA))
    e("s_lshr_b32 s45, s%d, 1" % S_W)
    e("s_and_b32 s46, s%d, 1" % S_W)
    e("s_add_u32 s47, s45, 12")
    e("s_lshl_b32 s47, s47, 12")
    e("s_lshl_b32 s48, s46, 3")
    e("s_add_u32 s47, s47, s48")
    e("v_add_u32 v%d, s47, v%d" % (V_ESA, V_L16))
    e("v_add_u32 v%d, %d, v%d" % (V_ESB, R_B, V_ESA))
    e("s_mul_i32 s37, s2, 106496")
    e("v_mul_u32_u24 v%d, 0x680, v%d" % (T + 3, T + 2))
    e("v_lshl_add_u32 v%d, v%d, 4, v%d" % (T + 3, T + 1, T + 3))
    e("v_add_u32 v%d, s37, v%d" % (T + 3, T + 3))
    e("s_mul_i32 s44, s%d, 384" % S_W)
    e("v_add_u32 v%d, s44, v%d" % (V_GP, T + 3))
    e("s_add_u32 s47, s45, 24")
    e("s_lshl_b32 s47, s47, 6")
    e("s_add_u32 s47, s47, s48")
    e("v_add_u32 v%d, s47, v%d" % (V_GS, T + 3))
    e("v_lshlrev_b32 v%d, 4, v%d" % (V_VB, T + 1))
    e("s_mul_i32 s43, s%d, 26624" % S_W)
    e("s_add_u32 s39, s37, s43")
    e("v_mul_u32_u24 v%d, 0x680, v%d" % (T + 4, T + 2))
    e("v_lshrrev_b32 v%d, 1, v%d" % (T + 5, T + 2))
    for t_ in range(2):
        e("v_add_u32 v%d, %d, v%d" % (T + 6, 4 * t_, T + 1))
        e("v_xor_b32 v%d, v%d, v%d" % (T + 6, T + 6, T + 5))
        e("v_lshl_add_u32 v%d, v%d, 4, v%d" % (V_X0R[t_][0], T + 6, T + 4))
        e("v_add_u32 v%d, 53248, v%d" % (V_X0R[t_][1], V_X0R[t_][0]))
    for k in range(8):
        e("v_xor_b32 v%d, %d, v%d" % (V_XV + k, k, V_LANE_T))
        e("v_lshlrev_b32 v%d, 4, v%d" % (V_XV + k, V_XV + k))
    for k in range(1, 8):
        n_ = (208 * k) // 64
        bnd = 208 * k - 64 * n_
        e("v_cmp_gt_u32 vcc, %d, v%d" % (bnd, V_LANE_T))
        e("s_nop 1")
        e("v_cndmask_b32 v%d, v%d, v%d, vcc" % (V_XS + k - 1, V_XV + k, V_XV + k - 1))
    e("s_mov_b32 s40, 26624")
    e("s_mov_b32 s41, 53248")
    e("s_mov_b32 s42, 79872")
    e("s_waitcnt lgkmcnt(0)")
    for (sb, sp, nbytes) in ((S_X0, 4, XBYTES), (S_OUT, 6, XBYTES)):
        e("s_mov_b32 s%d, s%d" % (sb, sp))
        e("s_mov_b32 s%d, s%d" % (sb + 1, sp + 1))
        e("s_mov_b32 s%d, %d" % (sb + 2, nbytes))
        e("s_mov_b32 s%d, 0x00020000" % (sb + 3))
    e("s_mul_i32 s44, s%d, %d" % (S_W, WAVE_STREAM))
    e("s_add_u32 s%d, s8, s44" % S_WP)
    e("s_addc_u32 s%d, s9, 0" % (S_WP + 1))
    e("s_mov_b32 s%d, %d" % (S_WP + 2, WAVE_STREAM))
    e("s_mov_b32 s%d, 0x00020000" % (S_WP + 3))
    e("s_mul_i32 s44, s%d, %d" % (S_W, BIAS_WAVE))
    e("s_add_u32 s44, s44, %d" % WBYTES)
    e("s_add_u32 s%d, s8, s44" % S_BI)
    e("s_addc_u32 s%d, s9, 0" % (S_BI + 1))
    e("s_mov_b32 s%d, %d" % (S_BI + 2, BIAS_WAVE))
    e("s_mov_b32 s%d, 0x00020000" % (S_BI + 3))
    em.stamp()

    M = []
    meta = []
    kstart = {}
    fr = 0
    kk = 0
    frag_first = []
    for l in range(3):
        for g in range(2):
            for i in range(26):
                kstart[(l, g, i)] = len(M)
                for c, tl in enumerate(G_TILES[g]):
                    frag_first.append(len(M))
                    for u in range(4):
                        M.append(op_mfma(u, tl, fr % D, kk % 2))
                        meta.append((l, g, i, c, u))
                    fr += 1
                kk += 1
    NM = len(M)
    S = Sched(NM)
    before = [[] for _ in range(NM + 1)]

    def ring_load_ops(n):
        ops = []
        if n >= FR_WAVE:
            return ops
        if n % 4 == 0:
            ops.append(op_salu("s_mov_b32 s%d, %d" % (S_WOFF, n * 1024)))
        ops.append(Op("buffer_load_dwordx4 %s, v%d, %s, s%d offen offset:%d" % (ar(ring(n % D)), V_L16, srd(S_WP), S_WOFF, (n % 4) * 1024),
                      "vm_ld", V(V_L16), A(ring(n % D), 4), accw=True))
        return ops

    def barrier(reads=()):
        return Op("s_barrier", "barrier", reads, ())

    bar_pos = []

    def add_barrier(j, reads=()):
        before[j].append(barrier(reads))
        S.reserve(j - 1)
        bar_pos.append(j)

    seq = [(l, g, i) for l in range(3) for g in range(2) for i in range(26)]

    AH = P.DMA_AHEAD
    i = 2
    while i < 26 and not P.BURST:
        chunk = [x for x in (i, i + 1) if x < 26]
        add_barrier(kstart[(0, 0, i - 1)], ["L:dma%d" % x for x in chunk])
        i += 2
    for l in range(2):
        add_barrier(kstart[(l, 1, 25)])
        add_barrier(kstart[(l + 1, 0, 13)])

    def xfrag_reads(l, i, buf):
        ops = []
        for u in range(4):
            if l == 0:
                T_ = KT(i)
                vb, off = V_X0R[T_ & 1][u >> 1], (u & 1) * 26624 + 128 * (T_ >> 1)
            else:
                vb, off = lds_ref(xblock_addr(l, i, u))
            ops.append(Op("ds_read_b128 %s, v%d offset:%d" % (ar(xfrag(buf, u)), vb, off), "ds_rd", V(vb), A(xfrag(buf, u), 4)))
        return ops

    for k in range(len(seq) - 1):
        l, g, i = seq[k]
        l2, g2, i2 = seq[k + 1]
        cur = kstart[(l, g, i)] + 1
        for op in xfrag_reads(l2, i2, (k + 1) % 2):
            cur = S.place(op, cur)
        assert cur < kstart[(l, g, i)] + 4 * len(G_TILES[g]) - 2, (l, g, i, cur)

    cur = 0
    NI = min(P.INIT_RING, D)
    for n in range(NI, FR_WAVE + D):
        jm = max(frag_first[n - D] + 3 + P.RLAG, cur) if n >= D else cur
        for op in ring_load_ops(n):
            cur = S.place(op, jm)
            jm = cur


    def dma_ops(n):
        r0, r1 = (64 * n) // 104, (64 * n + 63) // 104
        if (r0 >> 1) == (r1 >> 1):
            vreg = V_XV + (r0 >> 1)
        else:
            vreg = V_XS + (r1 >> 1) - 1
        return [op_salu("s_add_u32 m0, s43, %d" % (1024 * n)),
                op_salu("s_add_u32 s%d, s39, %d" % (S_DOFF, 1024 * n)),
                Op("buffer_load_dwordx4 v%d, %s, s%d offen lds" % (vreg, srd(S_X0), S_DOFF), "dma", V(vreg), ["L:dma%d" % n])]

    cur = 0
    B_ = P.DMAB
    for i in range(AH, 26 if not P.BURST else AH):
        ks = ((i - AH) // B_) * B_
        jm = max(cur, kstart[(0, 0, ks)])
        for op in dma_ops(i):
            cur = S.place(op, jm)
            jm = cur
        assert cur < kstart[(0, 0, i - 3)], (i, cur)

    def x0p_ops(g):
        ops = []
        TX = [[14, 15], [16, 17]]
        TS_ = [18, 19]
        if g == 0:
            ops.append(op_salu("s_mul_i32 s44, s%d, 384" % S_W))
            for t_ in range(2):
                for uh in range(2):
                    ops.append(op_valu("v_add_u32 v%d, s44, v%d" % (TX[t_][uh], V_X0R[t_][uh]), V(V_X0R[t_][uh]), V(TX[t_][uh])))
            ops.append(op_salu("s_cmp_ge_u32 s%d, 2" % S_W))
            ops.append(op_salu("s_cselect_b64 vcc, -1, 0"))
            for uh in range(2):
                ops.append(op_valu("v_cndmask_b32 v%d, v%d, v%d, vcc" % (TS_[uh], V_X0R[0][uh], V_X0R[1][uh]), V(V_X0R[0][uh]) + V(V_X0R[1][uh]), V(TS_[uh])))
            ops.append(op_salu("s_and_b32 s44, s%d, 1" % S_W))
            ops.append(op_salu("s_lshl_b32 s44, s44, 3"))
            for uh in range(2):
                ops.append(op_valu("v_add_u32 v%d, s44, v%d" % (TS_[uh], TS_[uh]), V(TS_[uh]), V(TS_[uh])))
            for u in range(4):
                ops.append(Op("ds_read_b64 %s, v%d offset:%d" % (ar(x0p_single(u), 2), TS_[u >> 1], (u & 1) * 26624 + 128 * 12), "ds_rd", V(TS_[u >> 1]), A(x0p_single(u), 2)))
            prange = range(3)
        else:
            prange = range(3, 6)
        for p in prange:
            for u in range(4):
                vb = TX[p & 1][u >> 1]
                ops.append(Op("ds_read_b128 %s, v%d offset:%d" % (ar(x0p_pair(u, p)), vb, (u & 1) * 26624 + 128 * (p >> 1)), "ds_rd", V(vb), A(x0p_pair(u, p), 4)))
        return ops
    S.track(x0p_ops(0) + x0p_ops(1), kstart[(0, 0, 2)], kstart[(0, 0, 20)])

    def acc_init_ops(tiles):
        ops = []
        for tl in tiles:
            a0 = acc(0, tl)
            for u in (3, 2, 1, 0):
                a = acc(u, tl)
                for j in range(4):
                    ops.append(op_valu("v_add_f32 v%d, 1.0, v%d" % (a + j, a0 + j), V(a0 + j), V(a + j)))
        return ops

    ctr = [0, 0]
    tail_ops = []
    for l in range(3):
        last = (l == 2)
        pre, ops = epi_group(l, 0, last, ctr)
        endp = S.track(pre + ops, kstart[(l, 1, 0)] + 10, kstart[(l, 1, P.E0END)])
        if not last:
            assert endp < kstart[(l, 1, 25)] - 1, ("G0 epilogue overflow", l, endp, kstart[(l, 1, 25)])
        pre, ops = epi_group(l, 1, last, ctr)
        if not last:
            cur = kstart[(l, 1, 23)]
            for op in pre:
                cur = S.place(op, cur)
            assert cur < kstart[(l + 1, 0, 0)]
            endp = S.track(ops, kstart[(l + 1, 0, 0)] + 10, kstart[(l + 1, 0, P.E1END)])
            assert endp < kstart[(l + 1, 0, 13)] - 1, ("G1 epilogue overflow", l, endp, kstart[(l + 1, 0, 13)])
        else:
            tail_ops = ops
    S.track([bias_load(0, tl, acc(0, tl)) for tl in G_TILES[1]], kstart[(0, 0, 3)], kstart[(0, 0, 5)])
    S.track(acc_init_ops(G_TILES[1]), kstart[(0, 0, 10)], kstart[(0, 0, 22)])

    E = em.emit
    nr = 0
    if P.BURST:
        for i in range(26):
            for op in dma_ops(i):
                E(op)
        em.stamp()
        for tl in G_TILES[0]:
            E(bias_load(0, tl, acc(0, tl)))
        for n in range(NI):
            for op in ring_load_ops(n):
                E(op)
        em.stamp()
        for op in acc_init_ops(G_TILES[0]):
            E(op)
        E(barrier(["L:dma%d" % x for x in range(26)]))
    for i in range(2 if not P.BURST else 0):
        for op in dma_ops(i):
            E(op)
    for tl in G_TILES[0] if not P.BURST else []:
        E(bias_load(0, tl, acc(0, tl)))
    while nr < min(14, D) and not P.BURST:
        for op in ring_load_ops(nr):
            E(op)
        nr += 1
    for i in range(2, 4 if not P.BURST else 2):
        for op in dma_ops(i):
            E(op)
    while nr < D and not P.BURST:
        for op in ring_load_ops(nr):
            E(op)
        nr += 1
    for i in range(4, AH if not P.BURST else 4):
        for op in dma_ops(i):
            E(op)
    if not P.BURST:
        for tl in G_TILES[1]:
            E(bias_load(0, tl, acc(0, tl)))
        for op in acc_init_ops(G_TILES[0]):
            E(op)
        E(barrier(["L:dma0", "L:dma1"]))
    em.stamp()
    for op in xfrag_reads(0, 0, 0):
        E(op)
    for j in range(NM):
        l, g, i, c, u = meta[j]
        if P.STAMPS and i == 0 and c == 0 and u == 0:
            em.stamp()
        for op in before[j]:
            E(op)
        E(M[j])
        for op in S.ops[j]:
            E(op)
    for op in S.ops[NM]:
        E(op)
    em.stamp()
    for op in deferred:
        E(op)
    for op in tail_ops:
        E(op)
    em.dump_stamps()
    em.label("L_done")
    e("s_endpgm")
    sys.stderr.write("main: %d instrs, waits %d, nops %d\n" % (em.n, em.stats["waits"], em.stats["nops"]))
    return "\n".join(em.out) + "\n"


KD = """.section .rodata,"a"
.p2align 6
.amdhsa_kernel {name}
  .amdhsa_next_free_vgpr {vgpr}
  .amdhsa_next_free_sgpr {sgpr}
  .amdhsa_accum_offset {acco}
  .amdhsa_group_segment_fixed_size 0
  .amdhsa_kernarg_size 48
  .amdhsa_user_sgpr_count 2
  .amdhsa_user_sgpr_kernarg_segment_ptr 1
  .amdhsa_system_sgpr_workgroup_id_x 1
.end_amdhsa_kernel
"""


def main():
    args = sys.argv[1:]
    path = "standalone__cross_network_dcn__recsys.s"
    for a in args:
        if a == "--stamps":
            P.STAMPS = True
        elif a.startswith("--D="):
            P.D = int(a[4:])
        elif a.startswith("--LA="):
            P.LA = int(a[5:])
        elif a.startswith("--AH="):
            P.DMA_AHEAD = int(a[5:])
        elif a == "--defer":
            P.DEFER = True
        elif a.startswith("--NI="):
            P.INIT_RING = int(a[5:])
        elif a == "--pf":
            P.PREFETCH = True
        elif a == "--burst":
            P.BURST = True
        elif a.startswith("--DMAB="):
            P.DMAB = int(a[7:])
        elif a.startswith("--E0="):
            P.E0END = int(a[5:])
        elif a.startswith("--E1="):
            P.E1END = int(a[5:])
        else:
            path = a
    assert 4 * P.D + 32 + 104 <= 256
    out = HEADER
    out += "; @launch kernel=dcn_prep_kernel grid=(%d,1,1) block=(832,1,1) lds=0\n" % (568 if P.PREFETCH else 312)
    out += "; @launch kernel=%s grid=(256,1,1) block=(256,1,1) lds=%d\n" % (KNAME, LDS_BYTES)
    out += '.amdgcn_target "amdgcn-amd-amdhsa--gfx950"\n.text\n'
    out += ".globl dcn_prep_kernel\n.p2align 8\n.type dcn_prep_kernel,@function\n"
    out += gen_prep()
    out += ".globl %s\n.p2align 8\n.type %s,@function\n" % (KNAME, KNAME)
    out += gen_main()
    out += KD.format(name="dcn_prep_kernel", vgpr=72, sgpr=56, acco=72)
    out += KD.format(name=KNAME, vgpr=256 + 4 * P.D + 136, sgpr=96, acco=256)
    open(path, "w").write(out)


if __name__ == "__main__":
    main()
```
